```python
import torch

def _softmax(x, axis=-1):
    return torch.softmax(x, dim=axis)
def _gelu(x):
    return torch.nn.functional.gelu(x, approximate="tanh")
def _silu(x):
    return torch.nn.functional.silu(x)
def _sigmoid(x):
    return torch.sigmoid(x)
def _layernorm(x, axis=-1, eps=1e-5):
    m = x.mean(dim=axis, keepdim=True)
    v = x.var(dim=axis, keepdim=True, unbiased=False)
    return (x - m) / torch.sqrt(v + eps)
def _scatter_add(tgt, idx, src, axis=0):
    return tgt.clone().index_add_(axis, idx, src)
def _segment_sum(src, seg, n):
    out = torch.zeros((n,) + src.shape[1:], dtype=src.dtype)
    return out.index_add_(0, seg, src)
def _pad(x, pw):
    flat = tuple(v for pair in reversed(pw) for v in pair)
    return torch.nn.functional.pad(x, flat)

kernel_name = 'recurrent_scan__ssm_conv_s4__mixer_channel_mlp__prompt'

def setup_inputs():

    _w = (lambda a: (lambda t: t.to(torch.bfloat16) if t.is_floating_point() else t)(torch.as_tensor(a)))
    def _A_setup():
        B, L, D, N = 1, 2048, 448, 256
        A_re = -(lambda _x: torch.exp(torch.as_tensor(_x)))((lambda *s: torch.randn(*s, dtype=torch.bfloat16) * 3.2)(D, N))
        A_im = torch.pi * (lambda *s: torch.randn(*s, dtype=torch.bfloat16) * 0.2)(D, N)
        B_re = (lambda *s: torch.randn(*s, dtype=torch.bfloat16) * 0.2)(D, N)
        B_im = (lambda *s: torch.randn(*s, dtype=torch.bfloat16) * 0.2)(D, N)
        C_re = (lambda *s: torch.randn(*s, dtype=torch.bfloat16) * 0.2)(D, N)
        C_im = (lambda *s: torch.randn(*s, dtype=torch.bfloat16) * 0.2)(D, N)
        log_dt = (lambda *s: torch.randn(*s, dtype=torch.bfloat16) * 0.2)(D) * 0.5 - 4.0
        Dskip = (lambda *s: torch.randn(*s, dtype=torch.bfloat16) * 0.2)(D)
        return {
            "u": _w((lambda *s: torch.randn(*s, dtype=torch.bfloat16) * 0.05)(B, L, D)),
            "A_re": _w(A_re),
            "A_im": _w(A_im),
            "B_re": _w(B_re),
            "B_im": _w(B_im),
            "C_re": _w(C_re),
            "C_im": _w(C_im),
            "log_dt": _w(log_dt),
            "Dskip": _w(Dskip),
        }
    _A_in = _A_setup()

    def _B_setup():
        B, S, D, F = 1, 2048, 448, 1792
        return {
            "x": _w((lambda *s: torch.randn(*s, dtype=torch.bfloat16) * 0.05)(B, S, D)),
            "w1": _w((lambda *s: torch.randn(*s, dtype=torch.bfloat16) * 3.2)(D, F) * (D ** -0.5)),
            "b1": _w((lambda *s: torch.randn(*s, dtype=torch.bfloat16) * 1.6)(F)),
            "w2": _w((lambda *s: torch.randn(*s, dtype=torch.bfloat16) * 0.1)(F, D) * (F ** -0.5)),
            "b2": _w((lambda *s: torch.randn(*s, dtype=torch.bfloat16) * 0.2)(D)),
        }
    _B_in = _B_setup()

    return {
        "A_u": _A_in["u"],
        "A_A_re": _A_in["A_re"],
        "A_A_im": _A_in["A_im"],
        "A_B_re": _A_in["B_re"],
        "A_B_im": _A_in["B_im"],
        "A_C_re": _A_in["C_re"],
        "A_C_im": _A_in["C_im"],
        "A_log_dt": _A_in["log_dt"],
        "A_Dskip": _A_in["Dskip"],
        "B_x": _B_in["x"],
        "B_w1": _B_in["w1"],
        "B_b1": _B_in["b1"],
        "B_w2": _B_in["w2"],
        "B_b2": _B_in["b2"],
    }

def reference(A_u, A_A_re, A_A_im, A_B_re, A_B_im, A_C_re, A_C_im, A_log_dt, A_Dskip, B_x, B_w1, B_b1, B_w2, B_b2):
    def _A_ref(u, A_re, A_im, B_re, B_im, C_re, C_im, log_dt, Dskip):
        Bsz, L, D = u.shape
        dt = torch.exp(log_dt)[:, None]
        A = A_re + 1j * A_im
        Bc = B_re + 1j * B_im
        Cc = C_re + 1j * C_im
        logdA = dt * A
        dB = dt * Bc
        l = (lambda x, dt: x.to(dt))(torch.arange(L), A_re.dtype)
        P = torch.exp(logdA[:, :, None] * l[None, None, :])
        K = torch.einsum("dn,dnl,dn->dl", Cc, P, dB).real
        L2 = 2 * L
        Kp = _pad(K, ((0, 0), (0, L)))
        up = (lambda x, *d: x.permute(*d))(u, 0, 2, 1)
        up = _pad(up, ((0, 0), (0, 0), (0, L)))
        Kf = (lambda x, axes=(-2,-1): torch.fft.rfft2(x.float(), dim=axes))(Kp[:, None, :], axes=(-2, -1))
        Uf = (lambda x, axes=(-2,-1): torch.fft.rfft2(x.float(), dim=axes))(up[:, :, None, :], axes=(-2, -1))
        Yf = Uf * Kf[None, :, :, :]
        y = (lambda x, s, axes=(-2,-1): torch.fft.irfft2(x, s=s, dim=axes).to(torch.bfloat16))(Yf, (1, L2), axes=(-2, -1))[:, :, 0, :L]
        y = (lambda x, *d: x.permute(*d))(y, 0, 2, 1) + u * Dskip[None, None, :]
        return y

    def _B_ref(x, w1, b1, w2, b2):
        y = _layernorm(x, axis=-1)
        h = _gelu(torch.einsum("bsd,df->bsf", y, w1) + b1)
        return torch.einsum("bsf,fd->bsd", h, w2) + b2

    x = A_u
    xn = _layernorm(x, axis=-1)
    s = _A_ref(xn, A_A_re, A_A_im, A_B_re, A_B_im, A_C_re, A_C_im, A_log_dt, A_Dskip)
    g = _silu(_B_ref(xn, B_w1, B_b1, B_w2, B_b2))
    return x + s * g
```

```python
import re
KN='recurrent_scan__ssm_conv_s4__mixer_channel_mlp__prompt_kernel'
TRANS=('v_exp_f32','v_log_f32','v_rcp_f32','v_rsq_f32','v_sqrt_f32','v_sin_f32','v_cos_f32')
def regs(tok):
    tok=tok.strip()
    t=tok.lstrip('-').strip('|')
    if t.startswith('neg(') or t.startswith('abs('): t=t[4:-1]
    m=re.fullmatch(r'([vsa])(\d+)',t)
    if m: return {(m.group(1),int(m.group(2)))}
    m=re.fullmatch(r'([vsa])\[(\d+):(\d+)\]',t)
    if m: return {(m.group(1),i) for i in range(int(m.group(2)),int(m.group(3))+1)}
    if t in('vcc','vcc_lo','vcc_hi'): return {('vcc',0)}
    if t=='m0': return {('m0',0)}
    if t in('exec','exec_lo','exec_hi'): return {('exec',0)}
    return set()
class I:
    def __init__(s,text):
        s.text=text
        t=text.split(';')[0].strip()
        p=t.split(None,1); s.op=p[0]; rest=p[1] if len(p)>1 else ''
        ops=[o.strip() for o in re.split(r',(?![^\[]*\])',rest)] if rest else []
        mods=''
        if ops:
            q=ops[-1].split(None,1)
            ops[-1]=q[0]; mods=q[1] if len(q)>1 else ''
        s.ops=ops; s.mods=mods
        op=s.op; s.defs=set(); s.uses=set()
        s.kind='other'
        R=[regs(o) for o in ops]
        if op.startswith('v_mfma'):
            s.kind='mfma'; s.defs=R[0]; s.A=R[1]; s.B=R[2]; s.C=R[3]; s.uses=R[1]|R[2]|R[3]
            s.passes=8 if '32x32x16' in op else 4
        elif op.startswith('v_'):
            s.kind='valu'
            if op.startswith('v_permlane') and 'swap' in op:
                s.defs=R[0]|R[1]; s.uses=R[0]|R[1]
            elif op.startswith('v_cmp'):
                s.defs=R[0]; s.uses=set().union(*R[1:])
            elif re.match(r'v_(add|sub|subrev|addc|subb)_co',op) :
                s.defs=R[0]|R[1]; s.uses=set().union(*R[2:])
            else:
                s.defs=R[0]; s.uses=set().union(*R[1:]) if len(R)>1 else set()
                if op.startswith('v_cndmask') and len(ops)==3: s.uses|={('vcc',0)}
                if op.startswith(('v_fmac','v_mac','v_dot2c','v_writelane')) or 'dpp' in op or 'row_' in mods or 'quad_perm' in mods or 'UNUSED_PRESERVE' in mods: s.uses|=R[0]
            s.trans=op.replace('_e32','').replace('_e64','') in TRANS
            s.dpp=('row_' in mods or 'quad_perm' in mods or 'wave_' in mods)
        elif op.startswith('ds_'):
            s.kind='ds'
            if op.startswith(('ds_read','ds_bpermute','ds_swizzle')) or '_rtn' in op:
                s.defs=R[0]; s.uses=set().union(*R[1:]) if len(R)>1 else set()
            else: s.uses=set().union(*R) if R else set()
            if 'addtid' in op: s.uses|={('m0',0)}
        elif op.startswith(('buffer_','global_')):
            s.kind='vm'
            allm=(' '+mods+' ')
            s.lds=' lds ' in allm
            if op.startswith(('buffer_inv','buffer_wbl2')): pass
            elif 'load' in op and not s.lds:
                s.defs=R[0]; s.uses=set().union(*R[1:])
                if 'd16' in op: s.uses|=R[0]
            elif 'atomic' in op and ' sc0 ' in allm:
                s.defs=R[0]; s.uses=set().union(*R)
            else:
                s.uses=set().union(*R)
                if s.lds: s.uses|={('m0',0)}
            s.wide=('store' in op and ('x3' in op or 'x4' in op))
            s.data=R[0] if R else set()
        elif op.startswith('s_'):
            s.kind='salu'
            if op.startswith(('s_load','s_memtime','s_memrealtime')): s.kind='smem'; s.defs=R[0]; s.uses=set().union(*R[1:]) if len(R)>1 else set()
            elif op.startswith(('s_cmp','s_cbranch','s_branch','s_waitcnt','s_barrier','s_nop','s_endpgm','s_sleep','s_setprio','s_bitcmp')): s.uses=set().union(*R) if R else set()
            else:
                s.defs=R[0] if R else set(); s.uses=set().union(*R[1:]) if len(R)>1 else set()
                if 'saveexec' in op: s.defs|={('exec',0)}
class Asm:
    def __init__(s):
        s.L=[]; s.hist=[]
        s.vq=[]; s.lq=[]
        s.nops=0
    def text(s): return '\n'.join(s.L)+'\n'
    def raw(s,t): s.L.append(t)
    def label(s,n): s.L.append(n+':')
    def _emit(s,t,states=1):
        i=I(t); s.L.append('    '+t); s.hist.append((i,states)); s.hist=s.hist[-24:]
        return i
    def _wait(s,vm=None,lg=None):
        t='s_waitcnt'
        if vm is not None: t+=f' vmcnt({min(vm,63)})'; s.vq=s.vq[len(s.vq)-min(vm,63):] if vm>0 else []
        if lg is not None: t+=f' lgkmcnt({min(lg,15)})'; s.lq=s.lq[len(s.lq)-min(lg,15):] if lg>0 else []
        s._emit(t)
    def wait_vm(s,tag=None):
        if tag is None:
            s._wait(vm=0); return
        idx=[k for k,e in enumerate(s.vq) if e[1]==tag]
        if idx: s._wait(vm=len(s.vq)-1-idx[-1])
    def wait_lg(s,tag=None):
        if tag is None:
            s._wait(lg=0); return
        idx=[k for k,e in enumerate(s.lq) if e[1]==tag]
        if idx:
            if any(e[2] for e in s.lq): s._wait(lg=0)
            else: s._wait(lg=len(s.lq)-1-idx[-1])
    def save(s): return (list(s.vq),list(s.lq))
    def restore(s,st): s.vq=list(st[0]); s.lq=list(st[1])
    def need(s,i):
        n=0; d=0
        for p,st in reversed(s.hist):
            w=0
            k=p.kind
            if k=='valu':
                vd={r for r in p.defs if r[0] in'va' and r[0]!='vcc'}
                sd={r for r in p.defs if r[0] in('s','vcc')}
                if i.kind=='mfma' and vd&i.uses: w=max(w,2)
                if i.kind=='valu':
                    if p.trans and not i.trans and vd&i.uses: w=max(w,1)
                    if p.trans and i.trans and vd&i.uses: w=max(w,1)
                    if i.op.startswith(('v_readfirstlane','v_readlane')) and vd&i.uses: w=max(w,1)
                    if i.op.startswith('v_permlane') and vd&i.uses: w=max(w,2)
                    if i.dpp and vd&i.uses: w=max(w,2)
                    if sd&i.uses: w=max(w,4 if i.op.startswith(('v_readlane','v_writelane')) else 2)
                    if ('op_sel' in p.mods and not p.op.startswith('v_pk') or 'dst_sel' in p.mods) and vd&(i.uses|i.defs): w=max(w,1)
                if i.kind=='vm' and sd&i.uses: w=max(w,5)
                if i.kind=='salu' and sd&i.uses: w=max(w,1)
            elif k=='mfma':
                P=p.passes; big={4:8,8:12}[P]; ov={4:6,8:10}[P]; war={4:3,8:7}[P]
                if i.kind=='mfma':
                    if p.defs&(i.A|i.B): w=max(w,big)
                    if p.defs&i.C and not (p.defs==i.C and i.passes==P): w=max(w,ov)
                    if p.defs&i.defs and not p.defs&i.C: w=max(w,ov)
                elif i.kind in('valu','vm','ds'):
                    if p.defs&(i.uses|i.defs): w=max(w,big)
                    if i.kind=='valu' and p.C&i.defs: w=max(w,war)
            elif k=='salu':
                if ('m0',0) in p.defs and i.kind in('ds','vm') and ('m0',0) in i.uses: w=max(w,1)
            elif k=='vm':
                if getattr(p,'wide',False) and i.kind=='valu' and p.data&i.defs: w=max(w,2)
                if getattr(p,'wide',False) and i.kind in('ds','vm','mfma') and p.data&i.defs: w=max(w,1)
            n=max(n,w-d)
            d+=st
            if d>=20: break
        return n
    def __call__(s,t='',tag=None):
        for l in t.split('\n'):
            l=l.strip()
            if not l: continue
            if l.endswith(':'): s.label(l[:-1]); continue
            if l.startswith(('.',';')): s.L.append(l); continue
            i=I(l)
            touch=i.uses|i.defs
            vm=None
            for k in range(len(s.vq)-1,-1,-1):
                if s.vq[k][0]&touch: vm=len(s.vq)-1-k; break
            lg=None
            for k in range(len(s.lq)-1,-1,-1):
                if s.lq[k][0]&touch:
                    lg=0 if any(e[2] for e in s.lq) else len(s.lq)-1-k; break
            if vm is not None or lg is not None: s._wait(vm,lg)
            n=s.need(i)
            while n>0:
                m=min(n,16); s._emit(f's_nop {m-1}',m); s.nops+=1; n-=m
            if i.op=='s_nop': s._emit(l,int(i.ops[0])+1); continue
            if i.op=='s_waitcnt':
                m=re.search(r'vmcnt\((\d+)\)',l); v=int(m.group(1)) if m else None
                m=re.search(r'lgkmcnt\((\d+)\)',l); g=int(m.group(1)) if m else None
                if v is not None: s.vq=s.vq[max(0,len(s.vq)-v):] if v>0 else []
                if g is not None: s.lq=s.lq[max(0,len(s.lq)-g):] if g>0 else []
            s._emit(l)
            if i.kind=='vm' and not i.op.startswith(('buffer_inv','buffer_wbl2')): s.vq.append([set(i.defs),tag])
            if i.kind=='ds': s.lq.append([set(i.defs),tag,False])
            if i.kind=='smem': s.lq.append([set(i.defs),tag,True])
def kernel_header(name):
    return f'.globl {name}\n.p2align 8\n.type {name},@function\n{name}:\n'
def kernel_desc(name,vgpr,sgpr=102,accum=None):
    if accum is None: accum=(vgpr+3)//4*4
    return f'''.amdhsa_kernel {name}
  .amdhsa_next_free_vgpr {vgpr}
  .amdhsa_next_free_sgpr {sgpr}
  .amdhsa_accum_offset {accum}
  .amdhsa_group_segment_fixed_size 0
  .amdhsa_kernarg_size 136
  .amdhsa_user_sgpr_count 2
  .amdhsa_user_sgpr_kernarg_segment_ptr 1
  .amdhsa_system_sgpr_workgroup_id_x 1
.end_amdhsa_kernel
'''
def make_file(launches, kernels):
    s=''
    if len(launches)==1 and launches[0][0]==KN:
        n,g,b,l=launches[0]
        s+=f'; @launch grid=({g},1,1) block=({b},1,1) lds={l}\n'
    else:
        for n,g,b,l in launches:
            s+=f'; @launch kernel={n} grid=({g},1,1) block=({b},1,1) lds={l}\n'
    s+='.amdgcn_target "amdgcn-amd-amdhsa--gfx950"\n.text\n'
    for n,a,v,acc in kernels:
        s+=kernel_header(n)+a.text()
    s+='.section .rodata,"a"\n'
    for n,a,v,acc in kernels:
        s+='.p2align 6\n'+kernel_desc(n,v,102,acc)
    return s
def srd(a,d,base,nbytes):
    a(f's_mov_b32 s{d}, s{base}')
    a(f's_and_b32 s{d+1}, s{base+1}, 0xffff')
    a(f's_mov_b32 s{d+2}, {nbytes}')
    a(f's_mov_b32 s{d+3}, 0x00020000')
```

```python
import sys, math
sys.path.insert(0,'work')
from al import *
WS_H=0; WS_UR=0x800000; WS_SP=0xA00000; WS_TS=0xE00000
X_,W1,W2,WS,OUT,DBG,MS=8,12,16,20,24,28,32
sWV,sXCD,sI,sRB,sFS,sROT,sLT,sFH=3,40,41,42,43,44,45,46
LDS_TOTAL=163840
def f2u(x):
    import struct; return '0x%08x'%struct.unpack('<I',struct.pack('<f',x))[0]
NST=[0]
def stamp(a,on=True):
    if not on: return
    k=NST[0]; NST[0]+=1
    a(f's_memtime s[{64+2*k}:{65+2*k}]')
def stamps_out(a,base):
    n=NST[0]
    a('s_waitcnt vmcnt(0) lgkmcnt(0)')
    a(f's_lshl_b32 s60, s2, 3'); a(f's_add_u32 s60, s60, s{sWV}'); a('s_lshl_b32 s60, s60, 7'); a(f's_add_u32 s60, s60, {WS_TS+base}')
    a('s_mov_b64 s[62:63], exec'); a('s_mov_b64 exec, 1')
    a('v_mov_b32 v2, 0')
    for k in range(n):
        a(f'v_mov_b32 v3, s{64+2*k}')
        a(f'buffer_store_dword v3, v2, s[{WS}:{WS+3}], s60 offen offset:{4*k}')
    a('s_mov_b64 exec, s[62:63]')
    a('s_waitcnt vmcnt(0)')
    NST[0]=0
def prologue(a,need):
    a('s_cmp_ge_u32 s2, 256'); a('s_cbranch_scc1 L_end_%s'%a.name)
    a('s_getpc_b64 s[60:61]'); a.label('L_pc_%s'%a.name)
    a('s_load_dwordx2 s[4:5], s[0:1], 0'); a('s_load_dwordx4 s[48:51], s[0:1], 80'); a('s_load_dwordx4 s[52:55], s[0:1], 96')
    a('s_load_dwordx4 s[56:59], s[0:1], 112'); a('s_load_dwordx2 s[6:7], s[0:1], 128')
    a('v_lshlrev_b32 v2, 6, v0'); a(f'v_min_u32 v2, L_end_{a.name}-L_pc_{a.name}, v2')
    a('global_load_dword v255, v2, s[60:61]')
    a('v_lshrrev_b32 v1, 6, v0'); a(f'v_readfirstlane_b32 s{sWV}, v1'); a('v_and_b32 v1, 63, v0')
    a(f's_and_b32 s{sXCD}, s2, 7'); a(f's_lshr_b32 s{sI}, s2, 3'); a(f's_sub_u32 s{sI}, s{sI}, 4')
    srd(a,X_,4,1835008); srd(a,W1,48,1605632); srd(a,WS,6,268435456); srd(a,W2,52,1605632)
    srd(a,OUT,56,1835008); srd(a,DBG,58,256)
def bf16r(a,d,s):
    a(f'v_cvt_pk_bf16_f32 v{d}, v{s}, v{s}'); a(f'v_lshlrev_b32 v{d}, 16, v{d}')
def weave(a,mf,va):
    n=len(mf); k=0
    for i,m in enumerate(mf):
        for x in (m if isinstance(m,list) else [m]): a(x)
        e=(len(va)*(i+1)+n-1)//n
        while k<min(e,len(va)): a(va[k]); k+=1
    while k<len(va): a(va[k]); k+=1
def phase_ln(a,fused):
    XS=960; TB=61440; TS=144
    a('v_lshrrev_b32 v2, 3, v1'); a(f's_lshl_b32 s60, s{sWV}, 3'); a('v_add_u32 v2, s60, v2')
    a('s_lshl_b32 s61, s2, 6'); a('v_add_u32 v3, s61, v2'); a('v_mul_u32_u24 v3, 896, v3')
    a('v_and_b32 v4, 7, v1'); a('v_lshl_add_u32 v3, v4, 4, v3')
    for j in range(7): a(f'buffer_load_dwordx4 v[{16+4*j}:{19+4*j}], v3, s[{X_}:{X_+3}], 0 offen offset:{128*j}')
    a('v_sub_u32 v5, 63, v2'); a(f'v_mul_u32_u24 v5, {XS}, v5'); a('v_lshl_add_u32 v5, v4, 4, v5')
    a('v_bfe_u32 v6, v1, 2, 2'); a('v_add_u32 v6, s60, v6'); a(f'v_mul_u32_u24 v6, {XS}, v6')
    a('v_lshrrev_b32 v7, 4, v1'); a('v_lshl_add_u32 v6, v7, 5, v6'); a('v_and_b32 v7, 3, v1'); a('v_lshl_add_u32 v6, v7, 3, v6')
    a(f'v_mul_u32_u24 v7, {TS}, v1'); a(f's_lshl_b32 s60, s{sWV}, 4'); a(f's_add_u32 s60, s60, {TB}'); a('v_add_u32 v7, s60, v7')
    a('v_lshrrev_b32 v8, 3, v0'); a(f'v_mul_u32_u24 v9, {TS}, v8'); a('v_lshl_add_u32 v9, v4, 4, v9'); a(f'v_add_u32 v9, {TB}, v9')
    a('v_lshlrev_b32 v8, 12, v8'); a('v_lshl_add_u32 v8, v4, 4, v8')
    for k in range(4): a(f'v_mov_b32 v{10+k}, 0')
    a('s_mov_b32 s62, 0xffff0000')
    for k in range(28):
        lo,hi=48+2*k,49+2*k
        a(f'v_lshlrev_b32 v{lo}, 16, v{16+k}'); a(f'v_and_b32 v{hi}, s62, v{16+k}')
        a(f'v_add_f32 v10, v10, v{lo}'); a(f'v_add_f32 v11, v11, v{hi}')
        a(f'v_fmac_f32 v12, v{lo}, v{lo}'); a(f'v_fmac_f32 v13, v{hi}, v{hi}')
    a('v_add_f32 v10, v10, v11'); a('v_add_f32 v12, v12, v13')
    for m in ('quad_perm:[1,0,3,2]','quad_perm:[2,3,0,1]','row_half_mirror'):
        a(f'v_add_f32_dpp v10, v10, v10 {m} row_mask:0xf bank_mask:0xf')
        a(f'v_add_f32_dpp v12, v12, v12 {m} row_mask:0xf bank_mask:0xf')
    a(f'v_mul_f32 v10, {f2u(1/448)}, v10'); a(f'v_mul_f32 v12, {f2u(1/448)}, v12')
    a('v_fma_f32 v12, -v10, v10, v12'); a('v_max_f32 v12, 0, v12')
    bf16r(a,12,12); a(f'v_add_f32 v12, {f2u(1e-5)}, v12'); bf16r(a,12,12); a('v_sqrt_f32 v12, v12'); bf16r(a,12,12)
    a('v_rcp_f32 v12, v12'); bf16r(a,10,10); a('v_mul_f32 v10, v10, v12'); a('v_sub_f32 v10, 0, v10')
    for j in range(7):
        for e in range(4):
            k=4*j+e; lo,hi=48+2*k,49+2*k
            a(f'v_fma_f32 v{lo}, v{lo}, v12, v10'); a(f'v_fma_f32 v{hi}, v{hi}, v12, v10')
            a(f'v_cvt_pk_bf16_f32 v{16+k}, v{lo}, v{hi}')
        a(f'ds_write_b128 v5, v[{16+4*j}:{19+4*j}] offset:{128*j}')
    a('s_waitcnt lgkmcnt(0)'); a('s_barrier')
    for j in range(7):
        a(f'ds_read_b64_tr_b16 v[{16+4*j}:{17+4*j}], v6 offset:{128*j}')
        a(f'ds_read_b64_tr_b16 v[{18+4*j}:{19+4*j}], v6 offset:{128*j+4*XS}')
    for j in range(7): a(f'ds_write_b128 v7, v[{16+4*j}:{19+4*j}] offset:{64*TS*j}')
    a('s_waitcnt lgkmcnt(0)'); a('s_barrier')
    for j in range(7): a(f'ds_read_b128 v[{16+4*j}:{19+4*j}], v9 offset:{64*TS*j}')
    a('s_lshl_b32 s60, s2, 7'); a(f's_sub_u32 s60, {WS_UR+1984*2}, s60')
    for j in range(7):
        a(f'buffer_store_dwordx4 v[{16+4*j}:{19+4*j}], v8, s[{WS}:{WS+3}], s60 offen sc1')
        if j<6: a(f's_add_u32 s60, s60, {64*4096}')
    a('s_waitcnt vmcnt(0)')
    if fused:
        a('s_barrier')
        a(f's_cmp_lg_u32 s{sWV}, 0'); a('s_cbranch_scc1 L_end_%s'%a.name)
        a('s_mov_b64 exec, 1'); a('v_mov_b32 v2, 0'); a('v_mov_b32 v3, 1')
        a(f'buffer_atomic_add v3, v2, s[{DBG}:{DBG+3}], 0 offen offset:{FL_UR} sc1')
FL_UR=128; FL_H=0; FL_S=192
XR=16384; WR=81920; ST=0
def g1_ids(a):
    a(f's_mul_i32 s60, s{sI}, 37'); a('s_lshr_b32 s60, s60, 8')
    a('s_mul_i32 s61, s60, 7'); a(f's_sub_u32 s61, s{sI}, s61')
    a(f's_lshr_b32 s{sRB}, s{sXCD}, 1'); a(f's_lshl_b32 s{sRB}, s{sRB}, 2'); a(f's_add_u32 s{sRB}, s{sRB}, s60')
    a(f's_and_b32 s{sFS}, s{sXCD}, 1'); a(f's_mul_i32 s{sFS}, s{sFS}, 7'); a(f's_add_u32 s{sFS}, s{sFS}, s61')
    a(f's_add_u32 s{sROT}, s60, s61'); a(f's_cmp_ge_u32 s{sROT}, 7'); a('s_cselect_b32 s62, 7, 0'); a(f's_sub_u32 s{sROT}, s{sROT}, s62')
    a(f's_and_b32 s{sLT}, s{sWV}, 3'); a(f's_lshr_b32 s{sFH}, s{sWV}, 2')
sKX,sKW,sMX,sMW=47,36,37,38
def phase_g1(a,fused,ts,hook=None):
    g1_ids(a)
    a('v_lshrrev_b32 v5, 3, v1')
    a(f's_lshl_b32 s60, s{sRB}, 7'); a(f's_lshl_b32 s61, s{sWV}, 4'); a('s_add_u32 s60, s60, s61')
    a('v_add_u32 v6, s60, v5'); a('v_mul_u32_u24 v6, 896, v6')
    a('v_lshrrev_b32 v7, 4, v1'); a('v_xor_b32 v7, v7, v1'); a('v_and_b32 v7, 7, v7')
    if NOSW: a('v_and_b32 v7, 7, v1')
    a('v_lshl_add_u32 v2, v7, 4, v6')
    a('v_xor_b32 v7, 4, v7'); a('v_lshl_add_u32 v3, v7, 4, v6'); a(f'v_add_u32 v3, {8*896}, v3')
    a(f's_lshl_b32 s61, s{sWV}, 3'); a('v_add_u32 v6, s61, v5'); a('v_mul_u32_u24 v6, 3584, v6')
    a('v_lshrrev_b32 v7, 2, v1'); a('v_and_b32 v7, 4, v7'); a('v_xor_b32 v7, v7, v1'); a('v_and_b32 v7, 7, v7')
    a('v_lshl_add_u32 v4, v7, 4, v6'); a(f's_lshl_b32 s61, s{sFS}, 8'); a('v_add_u32 v4, s61, v4')
    a(f's_lshl_b32 s{sMX}, s{sWV}, 11'); a(f's_add_u32 s{sMX}, s{sMX}, {XR}')
    a(f's_lshl_b32 s{sMW}, s{sWV}, 10'); a(f's_add_u32 s{sMW}, s{sMW}, {WR}')
    a(f's_lshl_b32 s{sKX}, s{sROT}, 7')
    def adv(reg):
        a(f's_add_u32 s{reg}, s{reg}, 128'); a(f's_cmp_eq_u32 s{reg}, 896'); a(f's_cselect_b32 s{reg}, 0, s{reg}')
    def dma_x(c):
        a(f's_add_u32 m0, s{sMX}, {(c%4)*16384}')
        a(f'buffer_load_dwordx4 v2, s[{X_}:{X_+3}], s{sKX} offen lds',tag=f'u{c}')
        a(f's_add_u32 m0, s{sMX}, {(c%4)*16384+1024}')
        a(f'buffer_load_dwordx4 v3, s[{X_}:{X_+3}], s{sKX} offen lds',tag=f'u{c}')
    def dma_w(u):
        a(f's_mul_i32 s{sKW}, s{sKX}, {64*3584//128}')
        if u>=7: a(f's_add_u32 s{sKW}, s{sKW}, 128')
        a(f's_add_u32 m0, s{sMW}, {(u%10)*8192}')
        a(f'buffer_load_dwordx4 v4, s[{W1}:{W1+3}], s{sKW} offen lds',tag=f'u{u}')
        adv(sKX)
    for c in range(4): dma_x(c); dma_w(c)
    stamp(a,ts)
    srd(a,MS,50,3584)
    a('v_and_b32 v5, 31, v1'); a(f's_lshl_b32 s60, s{sFS}, 7'); a(f's_lshl_b32 s61, s{sFH}, 5'); a('s_add_u32 s60, s60, s61')
    a('v_add_lshl_u32 v6, v5, s60, 1')
    a(f'buffer_load_ushort v14, v6, s[{MS}:{MS+3}], 0 offen',tag='b1'); a(f'buffer_load_ushort v15, v6, s[{MS}:{MS+3}], 0 offen offset:128',tag='b1')
    a(f's_lshl_b32 s60, s{sRB}, 2'); a(f's_add_u32 s60, s60, s{sLT}'); a('s_mul_i32 s60, s60, 112')
    a(f's_lshl_b32 s61, s{sFS}, 3'); a('s_add_u32 s60, s60, s61'); a(f's_lshl_b32 s61, s{sFH}, 1'); a('s_add_u32 s60, s60, s61')
    a('s_lshl_b32 s60, s60, 10'); a('v_lshlrev_b32 v13, 4, v1'); a('v_add_u32 v13, s60, v13')
    a('v_lshrrev_b32 v10, 5, v1'); a('v_bfe_u32 v11, v1, 1, 3'); a('v_xor_b32 v11, v11, v10')
    a(f's_lshl_b32 s60, s{sFH}, 1'); a('v_xor_b32 v11, s60, v11'); a('v_lshlrev_b32 v11, 4, v11')
    a(f's_lshl_b32 s60, s{sLT}, 12'); a(f's_add_u32 s60, s60, {XR}')
    a('v_lshl_add_u32 v11, v5, 7, v11'); a('v_add_u32 v5, s60, v11')
    for ks in range(1,4): a(f'v_xor_b32 v{5+ks}, {32*ks}, v5')
    a('v_bfe_u32 v11, v1, 2, 2')
    a('v_lshl_add_u32 v12, v10, 3, v11'); a('v_lshlrev_b32 v12, 7, v12')
    a('v_lshrrev_b32 v11, 1, v11'); a(f'v_xor_b32 v11, s{sFH}, v11'); a('v_lshl_add_u32 v12, v11, 6, v12')
    a('v_bfe_u32 v11, v1, 4, 1'); a('v_lshl_add_u32 v12, v11, 5, v12')
    a('v_and_b32 v11, 3, v1'); a('v_lshl_add_u32 v12, v11, 3, v12')
    a(f's_lshl_b32 s60, s{sFH}, 11'); a(f's_add_u32 s61, s60, {WR}'); a('v_add_u32 v9, s61, v12')
    a(f's_sub_u32 s61, {WR+2048}, s60'); a('v_add_u32 v10, s61, v12')
    a('v_add_u32 v11, 40960, v9'); a('v_add_u32 v12, 40960, v10')
    AR=160; CS=192; ON=200; S1=204; T0=208; AP=212; BP=216; cA,cB,iR=220,221,222; G0=224; PK=240
    a('v_lshrrev_b32 v208, 2, v1'); a('v_and_b32 v208, 4, v208'); a('v_xor_b32 v208, v208, v1'); a('v_and_b32 v208, 7, v208')
    a('v_cmp_eq_u32 vcc, 0, v208'); a('v_mov_b32 v209, 0x3f803f80')
    a(f'v_cndmask_b32 v{ON}, 0, v209, vcc')
    for k in range(1,4): a(f'v_mov_b32 v{ON+k}, v{ON}')
    for k in range(4): a(f'v_mov_b32 v{S1+k}, 0')
    for k in (2,3): a(f'v_mov_b32 v{AP+k}, 0'); a(f'v_mov_b32 v{BP+k}, 0')
    a('s_mov_b32 s39, 0xffff0000')
    def reads(u):
        s=u%2; L=[]
        if u<7:
            for ks in range(4): L.append(f'ds_read_b128 v[{16+16*u+4*ks}:{19+16*u+4*ks}], v{5+ks} offset:{(u%4)*16384}')
        sl=u%10; hi=2 if sl>=5 else 0; off=(sl%5)*8192
        M=[]
        for ks in range(4):
            r=AR+16*s+4*ks; b=9+hi+(ks&1); o=off+(ks&2)*2048
            M.append(f'ds_read_b64_tr_b16 v[{r}:{r+1}], v{b} offset:{o}')
            M.append(f'ds_read_b64_tr_b16 v[{r+2}:{r+3}], v{b} offset:{o+512}')
        if u<7: return [x for ks in range(4) for x in (L[ks],M[2*ks],M[2*ks+1])]
        return M
    def mfmas(u):
        s=u%2; p=u//7; c=u%7; acc=128+16*p; cs=CS+4*p; out=[]
        for ks in range(4):
            r=AR+16*s+4*ks; x=16+16*c+4*ks
            C=f'v[{acc}:{acc+15}]' if (c or ks) else '0'
            C2=f'v[{cs}:{cs+3}]' if (c or ks) else '0'
            out.append(f'v_mfma_f32_32x32x16_bf16 v[{acc}:{acc+15}], v[{r}:{r+3}], v[{x}:{x+3}], {C}')
            if not NOCS: out.append(f'v_mfma_f32_16x16x32_bf16 v[{cs}:{cs+3}], v[{ON}:{ON+3}], v[{r}:{r+3}], {C2}')
        return out
    def stats(c):
        L=[]
        for ks in (0,2):
            for e in range(4):
                x=16+16*c+4*ks+e; t=T0+2*(e&1)
                L+= [f'v_lshlrev_b32 v{t}, 16, v{x}', f'v_and_b32 v{t+1}, s39, v{x}',
                     f'v_add_f32 v{S1}, v{S1}, v{t}', f'v_add_f32 v{S1+1}, v{S1+1}, v{t+1}',
                     f'v_fmac_f32 v{S1+2}, v{t}, v{t}', f'v_fmac_f32 v{S1+3}, v{t+1}, v{t+1}']
        return L
    def gelu(p):
        acc=128+16*p; L=[]
        for q in range(4):
            A=[acc+4*q+i for i in range(4)]; T=[G0+4*(q&1)+i for i in range(4)]
            L+=[f'v_mul_f32 v{t}, v{x}, v{x}' for t,x in zip(T,A)]
            L+=[f'v_fma_f32 v{t}, v{t}, v{cB}, v{cA}' for t in T]
            L+=[f'v_mul_f32 v{t}, v{x}, v{t}' for t,x in zip(T,A)]
            L+=[f'v_exp_f32 v{t}, v{t}' for t in T]
            L+=[f'v_fma_f32 v{t}, v{t}, v{iR}, v{iR}' for t in T]
            L+=[f'v_rcp_f32 v{t}, v{t}' for t in T]
            L+=[f'v_mul_f32 v{t}, v{x}, v{t}' for t,x in zip(T,A)]
            pk=PK+8*p+2*q
            L+=[f'v_cvt_pk_bf16_f32 v{pk}, v{T[0]}, v{T[1]}', f'v_cvt_pk_bf16_f32 v{pk+1}, v{T[2]}, v{T[3]}']
            if q&1:
                b=PK+8*p+4*(q>>1)
                L.append(f'buffer_store_dwordx4 v[{b}:{b+3}], v13, s[{WS}:{WS+3}], s{60+2*p+(q>>1)} offen sc1')
        return L
    def aprime(p):
        cs=CS+4*p
        return [f'v_cvt_pk_bf16_f32 v{T0}, v{cs}, v{cs}', f'v_lshlrev_b32 v{T0+1}, 16, v{T0}', f'v_sub_f32 v{T0+1}, v{cs}, v{T0+1}',
                f'v_cvt_pk_bf16_f32 v{AP}, v{cs}, v{T0+1}', f'v_and_b32 v{T0}, 0xffff, v{T0}', f'v_lshl_or_b32 v{AP+1}, v{14+p}, 16, v{T0}',
                f'v_mfma_f32_32x32x16_bf16 v[{128+16*p}:{143+16*p}], v[{AP}:{AP+3}], v[{BP}:{BP+3}], v[{128+16*p}:{143+16*p}]']
    sched={1:[('x',4),('w',4)],2:[('x',5),('w',5)],3:[('x',6),('w',6)],4:[('w',7),('w',8),('w',9)],5:[('w',10),('w',11),('w',12)],6:[('w',13)]}
    G=None
    for u in range(15):
        if u<14:
            a.wait_vm(f'u{u}'); a('s_waitcnt lgkmcnt(0)')
            if not (NOBAR and u>8): a('s_barrier')
            if u==0: stamp(a,ts)
            if u==7 or u==9: stamp(a,ts)
            for k,c in sched.get(u,[]): (dma_x if k=='x' else dma_w)(c)
            if hook: hook(a,u)
            rd=reads(u)
        else: rd=[]
        va=[]
        if u==8:
            a('v_and_b32 v208, 31, v1'); a(f's_lshl_b32 s60, s{sLT}, 9'); a('v_lshlrev_b32 v208, 3, v208'); a('v_add_u32 v208, s60, v208')
            for k,o in enumerate((0,256,2048,2304)): a(f'ds_read_b64 v[{G0+2*k}:{G0+2*k+1}], v208 offset:{ST+o}')
        if u>=1:
            mf=mfmas(u-1)
            if u-1<7: va=stats(u-1)
            if u-1<7 and NOST: va=[]
            if u-1<7 and NOMF: mf=['s_nop 0']*4
            if u==8:
                g=G0
                va=[f'v_add_f32 v{g}, v{g}, v{g+2}',f'v_add_f32 v{g+1}, v{g+1}, v{g+3}',f'v_add_f32 v{g+4}, v{g+4}, v{g+6}',f'v_add_f32 v{g+5}, v{g+5}, v{g+7}',
                    f'v_add_f32 v{g}, v{g}, v{g+4}',f'v_add_f32 v{g+1}, v{g+1}, v{g+5}',
                    f'v_mul_f32 v{g}, {f2u(-1/448)}, v{g}', f'v_mul_f32 v{g+1}, {f2u(1/448)}, v{g+1}',
                    f'v_fma_f32 v{g+1}, -v{g}, v{g}, v{g+1}', f'v_max_f32 v{g+1}, 0, v{g+1}']
                def r16(d,s): return [f'v_cvt_pk_bf16_f32 v{d}, v{s}, v{s}', f'v_lshlrev_b32 v{d}, 16, v{d}']
                va+=r16(g+2,g+1)+[f'v_add_f32 v{g+2}, {f2u(1e-5)}, v{g+2}']+r16(g+2,g+2)+[f'v_sqrt_f32 v{g+2}, v{g+2}']+r16(g+2,g+2)
                va+=[f'v_rcp_f32 v{g+3}, v{g+2}', f'v_mul_f32 v{g+1}, v{g+1}, v{g+3}', f'v_mul_f32 v{g+1}, v{g+1}, v{g+3}']
                va+=r16(g+1,g+1)+[f'v_add_f32 v{g+1}, {f2u(1e-5)}, v{g+1}']+r16(g+1,g+1)+[f'v_sqrt_f32 v{g+1}, v{g+1}']+r16(g+1,g+1)
                va+=[f'v_mul_f32 v{iR}, v{g+1}, v{g+2}', f'v_rcp_f32 v{g+3}, v{iR}']
                c0=-2*math.sqrt(2/math.pi)*math.log2(math.e); c1=c0*0.044715
                va+=[f'v_mul_f32 v{cA}, {f2u(c0)}, v{g+3}', f'v_mul_f32 v{cB}, v{g+3}, v{g+3}', f'v_mul_f32 v{cB}, v{cB}, v{g+3}', f'v_mul_f32 v{cB}, {f2u(c1)}, v{cB}']
                va+=[f'v_cmp_gt_u32 vcc, 32, v1',
                     f'v_cvt_pk_bf16_f32 v{g+4}, v{g}, v{g}', f'v_lshlrev_b32 v{g+5}, 16, v{g+4}', f'v_sub_f32 v{g+5}, v{g}, v{g+5}',
                     f'v_cvt_pk_bf16_f32 v{g+6}, v{iR}, v{iR}', f'v_lshlrev_b32 v{g+6}, 16, v{g+6}', f'v_sub_f32 v{g+7}, v{iR}, v{g+6}',
                     f'v_cndmask_b32 v{BP}, 0, v{g+4}, vcc', f'v_cndmask_b32 v{g+5}, 0, v{g+5}, vcc', f'v_cndmask_b32 v{g+6}, v{g+7}, v{g+6}, vcc',
                     f'v_cvt_pk_bf16_f32 v{BP+1}, v{g+5}, v{g+6}']
                va+=aprime(0)
                for k in range(4): va.append(f's_mov_b32 s{60+k}, {(4*(k>>1)+(k&1))*1024}')
                G=gelu(0)
            if u>=9:
                n=(len(G)+(14-u))//(15-u); va=G[:n]; G=G[n:]
                if NOG: va=[]
                if NORD: rd=[]
            mf2=[]
            for k,m in enumerate(mf):
                it=[m]
                take=(len(rd)+ (NG-1-k))//(NG-k) if k<NG else 0
                it+=rd[:take]; rd=rd[take:]
                mf2.append(it)
            weave(a,mf2,va)
            if u==7:
                a(f'v_add_f32 v{S1}, v{S1}, v{S1+1}'); a(f'v_add_f32 v{S1+1}, v{S1+2}, v{S1+3}')
                a(f's_lshl_b32 s60, s{sWV}, 9'); a('v_lshlrev_b32 v208, 3, v1'); a('v_add_u32 v208, s60, v208')
                a(f'ds_write_b64 v208, v[{S1}:{S1+1}] offset:{ST}')
        else:
            for x in rd: a(x)
    stamp(a,ts)
    for x in aprime(1): a(x)
    for x in gelu(1): a(x)
    stamp(a,ts)
import os
NG=int(os.environ.get('NG','4'))
NOBAR=int(os.environ.get('NOBAR','0'))
NOG=int(os.environ.get('NOG','0'))
NORD=int(os.environ.get('NORD','0'))
NOSW=int(os.environ.get('NOSW','0'))
NOST=int(os.environ.get('NOST','0'))
NOMF=int(os.environ.get('NOMF','0'))
NOCS=int(os.environ.get('NOCS','0'))
if __name__=='__main__':
    ts=True
    a=Asm(); a.name='A'
    prologue(a,None)
    a('s_cmp_lt_u32 s2, 32'); a('s_cbranch_scc1 L_ln')
    stamp(a,ts)
    st=a.save()
    phase_g1(a,False,ts)
    a('s_waitcnt vmcnt(0)'); stamp(a,ts)
    if ts: stamps_out(a,0)
    a('s_endpgm')
    a.label('L_ln'); a.restore(st)
    phase_ln(a,False)
    a.label('L_end_A'); a('s_endpgm')
    open(sys.argv[1],'w').write(make_file([(KN,256,512,LDS_TOTAL)],[(KN,a,256,256)]))
    print('nops',a.nops,'lines',len(a.L))
```

```python
from gen import *
KT=0; UR=33280; SCR=45056; W2R=49152; STG1=16384; STG2=114688
sP,sCH,sNQ=47,36,37
def cmul(a,d,x,y,t=166):
    a(f'v_pk_mul_f32 v[{t}:{t+1}], v[{x}:{x+1}], v[{y}:{y+1}] op_sel:[1,1] op_sel_hi:[1,0]')
    a(f'v_pk_fma_f32 v[{d}:{d+1}], v[{x}:{x+1}], v[{y}:{y+1}], v[{t}:{t+1}] op_sel:[0,0,0] op_sel_hi:[0,1,1] neg_lo:[0,0,1]')
def kgen_loads(a):
    a('s_load_dwordx8 s[80:87], s[0:1], 8'); a('s_load_dwordx8 s[88:95], s[0:1], 40')
    a(f's_sub_u32 s{sP}, s2, 32'); a(f's_lshr_b32 s{sCH}, s{sWV}, 2'); a(f's_and_b32 s{sNQ}, s{sWV}, 3')
    a(f's_lshl_b32 s60, s{sP}, 10'); a('v_lshlrev_b32 v134, 1, v0'); a('v_add_u32 v134, s60, v134')
    for k in range(6): a(f'global_load_ushort v{128+k}, v134, s[{80+2*k}:{81+2*k}]')
    a(f's_lshl_b32 s60, s{sP}, 2')
    a('s_load_dword s96, s[92:93], s60'); a('s_load_dword s97, s[94:95], s60')
def ur_load(a):
    a(f's_lshl_b32 s60, s{sP}, 13'); a(f's_add_u32 s60, s60, {WS_UR}'); a('v_lshlrev_b32 v248, 4, v0')
    a(f'buffer_load_dwordx4 v[252:255], v248, s[{WS}:{WS+3}], s60 offen sc1')
def ur_write(a):
    a('v_lshrrev_b32 v249, 8, v0'); a('v_mul_u32_u24 v249, 480, v249'); a('v_add_u32 v248, v248, v249')
    a(f'ds_write_b128 v248, v[252:255] offset:{UR}')
    a(f's_cmp_lg_u32 s{sNQ}, 0'); a(f's_cbranch_scc1 L_nz_{a.name}')
    st=a.save()
    a('s_mov_b64 exec, 0x3fffffff')
    for k in range(4): a(f'v_mov_b32 v{252+k}, 0')
    a(f'ds_write_b128 v248, v[252:255] offset:{UR+4096}')
    a('s_mov_b64 exec, -1'); a('s_waitcnt lgkmcnt(0)')
    a.label(f'L_nz_{a.name}'); a.restore(st)
def phase_kgen(a,ts,hook=None):
    L2E=math.log2(math.e)
    import numpy as np
    hi=float(np.float32(L2E)); lo=L2E-hi
    a(f's_lshl_b32 s60, s{sCH}, 4'); a('s_lshr_b32 s96, s96, s60'); a('s_lshl_b32 s96, s96, 16')
    a('s_lshr_b32 s97, s97, s60'); a('s_lshl_b32 s97, s97, 16')
    a(f'v_mov_b32 v166, {f2u(hi)}'); a('v_mul_f32 v167, s96, v166'); a('v_fma_f32 v166, s96, v166, -v167')
    a(f'v_mov_b32 v168, {f2u(lo)}'); a('v_fmac_f32 v166, s96, v168'); a('v_exp_f32 v167, v167')
    a(f'v_mul_f32 v166, {f2u(math.log(2))}, v166'); a('v_fma_f32 v167, v167, v166, v167'); bf16r(a,168,167)
    for k in range(6): a(f'v_lshlrev_b32 v{128+k}, 16, v{128+k}')
    a('v_mul_f32 v128, v128, v168'); a('v_mul_f32 v129, v129, v168'); a('v_mul_f32 v130, v130, v168'); a('v_mul_f32 v131, v131, v168')
    a(f'v_mul_f32 v128, {f2u(L2E)}, v128'); a(f'v_mul_f32 v129, {f2u(1/(2*math.pi))}, v129')
    a('v_mul_f32 v134, 0x43800000, v128'); a('v_mul_f32 v135, 0x43800000, v129')
    a('v_exp_f32 v128, v128'); a('v_fract_f32 v129, v129'); a('v_exp_f32 v134, v134'); a('v_fract_f32 v135, v135')
    g=lambda k:134+2*k
    H=lambda k:150+2*k
    a(f'v_cos_f32 v{g(1)}, v129'); a(f'v_sin_f32 v{g(1)+1}, v129'); a(f'v_cos_f32 v{H(1)}, v135'); a(f'v_sin_f32 v{H(1)+1}, v135')
    cmul(a,208,130,132)
    a(f'v_mul_f32 v{g(1)}, v{g(1)}, v128'); a(f'v_mul_f32 v{g(1)+1}, v{g(1)+1}, v128')
    a(f'v_mul_f32 v{H(1)}, v{H(1)}, v134'); a(f'v_mul_f32 v{H(1)+1}, v{H(1)+1}, v134')
    a(f's_mul_i32 m0, s{sWV}, 8704')
    row=lambda gh,rho: 8*(rho//4)+4*gh+rho%4
    pk=[0]
    def put(src,rows,neg=True):
        t=168+(pk[0]%4); pk[0]+=1
        a(f'v_cvt_pk_bf16_f32 v{t}, v{src}, {"-" if neg else ""}v{src+1}')
        for r in rows: a(f'ds_write_addtid_b32 v{t} offset:{SCR+272*r}')
    a('v_mov_b32 v172, 0x3f80'); a(f'ds_write_addtid_b32 v172 offset:{SCR+272*row(0,0)}')
    tt=[166,174]
    n=[0]
    def cm(d,x,y): cmul(a,d,x,y,tt[n[0]%2]); n[0]+=1
    cm(g(2),g(1),g(1)); cm(H(2),H(1),H(1)); put(g(1),[row(0,1)]); put(H(1),[row(1,0),row(1,1)])
    cm(g(4),g(2),g(2)); cm(H(4),H(2),H(2)); put(g(2),[row(0,2)]); put(H(2),[row(0,9)])
    cm(g(3),g(2),g(1)); cm(H(3),H(2),H(1)); put(g(4),[row(0,4)]); put(H(4),[row(0,12)])
    cm(g(8),g(4),g(4)); cm(H(5),H(4),H(1)); put(g(3),[row(0,3)]); put(H(3),[row(1,9)])
    cm(g(5),g(4),g(1)); cm(H(6),H(4),H(2)); put(g(8),[row(0,8)]); put(H(5),[row(1,12)])
    cm(g(6),g(4),g(2)); cm(H(7),H(4),H(3)); put(g(5),[row(0,5)]); put(H(6),[row(0,14)])
    cm(g(7),g(4),g(3)); cm(212,g(8),g(8)); put(g(6),[row(0,6)]); put(H(7),[row(1,14)])
    cm(210,208,g(8)); put(g(7),[row(0,7)])
    lst=[(H(1),g(2),[row(1,2)]),(H(1),g(4),[row(1,3),row(1,4),row(1,5)]),(H(1),g(6),[row(1,6)]),(H(1),g(8),[row(1,7),row(1,8)]),
         (H(2),g(4),[row(0,10)]),(H(2),g(8),[row(0,11)]),(H(3),g(4),[row(1,10)]),(H(3),g(8),[row(1,11)]),
         (H(4),g(8),[row(0,13)]),(H(5),g(8),[row(1,13)]),(H(6),g(8),[row(0,15)]),(H(7),g(8),[row(1,15)])]
    for k in range(0,12,2):
        cm(128,lst[k][0],lst[k][1]); cm(130,lst[k+1][0],lst[k+1][1]); put(128,lst[k][2]); put(130,lst[k+1][2])
    a('v_and_b32 v173, 31, v1'); a('v_mul_u32_u24 v173, 272, v173'); a('v_lshrrev_b32 v172, 5, v1'); a('v_lshl_add_u32 v173, v172, 4, v173')
    a('v_add_u32 v173, m0, v173')
    for ks in range(8): a(f'ds_read_b128 v[{176+4*ks}:{179+4*ks}], v173 offset:{SCR+32*ks}')
    if hook: hook(a,'g')
    cur=[208,210]; nxt=[214,216]
    cm(nxt[0],cur[0],212); cm(nxt[1],cur[1],212)
    a('s_waitcnt lgkmcnt(0)')
    for r in range(0,32,2):
        put(cur[0],[r],False); put(cur[1],[r+1],False)
        cur,nxt=nxt,cur
        if r+4<32: cm(nxt[0],cur[0],212); cm(nxt[1],cur[1],212)
    for ks in range(8):
        b=136+4*ks
        a(f'ds_read_b128 v[{b}:{b+3}], v173 offset:{SCR+32*ks}')
    for ks in range(8):
        b=136+4*ks
        a(f'v_mfma_f32_32x32x16_bf16 v[232:247], v[{176+4*ks}:{179+4*ks}], v[{b}:{b+3}], {"v[232:247]" if ks else "0"}')
    a(f's_mul_i32 s60, s{sCH}, {4*8704}'); a(f's_add_u32 s60, s60, {SCR}'); a('v_lshlrev_b32 v172, 2, v1'); a('v_add_u32 v172, s60, v172')
    a(f's_mul_i32 s61, s{sCH}, 16640'); a(f's_lshl_b32 s62, s{sNQ}, 9'); a('s_add_u32 s62, s62, s61')
    a('v_lshlrev_b32 v173, 3, v1'); a('v_add_u32 v173, s62, v173')
    a(f'v_add_u32 v174, {3*2080+12}, v173'); a(f'v_add_u32 v175, {5*2080+12}, v173')
    for r in range(16): a(f'ds_write_addtid_b32 v{232+r} offset:{SCR+272*r}')
    if hook: hook(a,'p')
    a('s_waitcnt lgkmcnt(0)'); a('s_barrier')
    stamp(a,ts)
    T=128
    a(f's_cmp_lg_u32 s{sNQ}, 0'); a(f's_cbranch_scc1 L_cd_{a.name}')
    st=a.save()
    for o in range(4):
        for e in range(9): a(f'ds_read_b32 v{176+9*o+e}, v172 offset:{o*8704+272*e}')
    a('v_mul_u32_u24 v170, 2080, v1'); a('v_add_u32 v170, s61, v170')
    for k in range(4): a(f'v_mov_b32 v{232+k}, 0')
    a('s_mov_b64 exec, 0xff'); a(f'ds_write_b128 v170, v[232:235] offset:{KT}'); a('s_mov_b64 exec, -1')
    for e in range(9): a(f'v_add_f32 v{176+e}, v{176+e}, v{185+e}')
    for e in range(9): a(f'v_add_f32 v{194+e}, v{194+e}, v{203+e}')
    for e in range(9): a(f'v_add_f32 v{T+e}, v{176+e}, v{194+e}')
    a('s_mov_b64 exec, 1'); a(f'v_add_f32 v{T}, s97, v{T}'); a(f'v_cvt_pk_bf16_f32 v232, 0, v{T}')
    a(f'ds_write_b32 v173, v232 offset:{KT+2080+12}'); a(f'ds_write_b32 v173, v232 offset:{KT+5*2080+8}'); a('s_mov_b64 exec, -1')
    a('s_waitcnt lgkmcnt(0)')
    a(f's_branch L_kw_{a.name}')
    a.label(f'L_cd_{a.name}'); a.restore(st)
    a(f's_lshl_b32 s60, s{sNQ}, 1'); a('s_add_u32 s60, s60, 8'); a(f's_cmp_eq_u32 s{sNQ}, 1'); a('s_cselect_b32 s60, 9, s60')
    a('s_cselect_b64 s[62:63], -1, 0'); a('s_mul_i32 s60, s60, 272'); a('v_add_u32 v172, s60, v172')
    for o in range(4):
        for e in range(3): a(f'ds_read_b32 v{176+3*o+e}, v172 offset:{o*8704+272*e}')
    a('s_mov_b32 s60, 0xaaaaaaaa'); a('s_or_b32 s60, s60, s62'); a('s_mov_b32 s61, s60')
    for e in range(3): a(f'v_add_f32 v{176+e}, v{176+e}, v{179+e}'); a(f'v_add_f32 v{182+e}, v{182+e}, v{185+e}')
    a(f'v_add_f32 v{T}, v176, v182'); a(f'v_add_f32 v{T+5}, v177, v183'); a(f'v_add_f32 v{T+6}, v178, v184')
    a(f'v_mov_b32 v{T+1}, v{T}'); a(f'v_mov_b32 v{T+2}, v{T}')
    a(f'v_cndmask_b32 v{T+3}, v{T}, v{T+5}, s[62:63]'); a(f'v_cndmask_b32 v{T+4}, v{T}, v{T+5}, s[60:61]')
    a(f'v_cndmask_b32 v{T+6}, v{T+5}, v{T+6}, s[62:63]'); a(f'v_mov_b32 v{T+7}, v{T+6}'); a(f'v_mov_b32 v{T+8}, v{T+6}')
    a.label(f'L_kw_{a.name}')
    E=140;O=144;EM=148;OM=150
    for k in range(4): a(f'v_cvt_pk_bf16_f32 v{O+k}, v{T+2*k+1}, v{T+2*k+2}')
    for k in range(4): a(f'v_cvt_pk_bf16_f32 v{E+k}, v{T+2*k}, v{T+2*k+1}')
    a(f'ds_write_b64 v173, v[{O}:{O+1}] offset:{KT+16}'); a(f'ds_write_b64 v173, v[{O+2}:{O+3}] offset:{KT+2080+16}')
    a(f'v_mov_b32 v{OM}, v{O+1}'); a(f'v_mov_b32 v{OM+1}, v{O+2}'); a(f'v_mov_b32 v{EM}, v{E+1}'); a(f'v_mov_b32 v{EM+1}, v{E+2}')
    a(f'ds_write_b64 v173, v[{E}:{E+1}] offset:{KT+7*2080+8}'); a(f'ds_write_b64 v173, v[{E+2}:{E+3}] offset:{KT+6*2080+16}')
    a(f'ds_write2_b32 v174, v{E}, v{E+3} offset0:0 offset1:1'); a(f'ds_write2_b32 v175, v{O}, v{O+3} offset0:0 offset1:1')
    a(f'ds_write_b64 v173, v[{EM}:{EM+1}] offset:{KT+2*2080+16}'); a(f'ds_write_b64 v173, v[{OM}:{OM+1}] offset:{KT+4*2080+16}')
def phase_conv(a,ts,fused,other=None):
    a(f's_cmp_ge_u32 s{sWV}, 4'); a(f's_cbranch_scc1 L_cv_skip_{a.name}')
    st=a.save()
    a(f's_lshr_b32 s60, s{sWV}, 1'); a(f's_and_b32 s61, s{sWV}, 1')
    a('s_mul_i32 s62, s60, 16640'); a('s_lshl_b32 s63, s61, 7'); a('s_add_u32 s62, s62, s63')
    A1,A2,BA=128,129,130
    a('v_and_b32 v131, 3, v1'); a('v_bfe_u32 v132, v1, 2, 1'); a('v_lshl_add_u32 v133, v131, 1, v132')
    a(f'v_mul_u32_u24 v{A1}, 2080, v133'); a('v_xor_b32 v133, 1, v133'); a(f'v_mul_u32_u24 v{A2}, 2080, v133')
    a('v_lshrrev_b32 v131, 4, v1'); a('v_bfe_u32 v132, v1, 2, 2'); a('v_lshl_add_u32 v133, v131, 1, v132')
    a('v_lshrrev_b32 v132, 1, v133'); a(f'v_lshl_add_u32 v{A1}, v132, 3, v{A1}')
    a('v_add_u32 v133, 1, v133'); a('v_lshrrev_b32 v132, 1, v133'); a(f'v_lshl_add_u32 v{A2}, v132, 3, v{A2}')
    a(f'v_add_u32 v{A1}, s62, v{A1}'); a(f'v_add_u32 v{A2}, s62, v{A2}')
    a('s_mul_i32 s62, s60, 4576'); a('s_lshl_b32 s63, s61, 8'); a('s_add_u32 s62, s62, s63'); a(f's_add_u32 s62, s62, {UR+480}')
    a('v_and_b32 v132, 15, v1'); a('v_lshlrev_b32 v132, 5, v132'); a(f'v_lshlrev_b32 v{BA}, 4, v131'); a(f'v_sub_u32 v{BA}, v{BA}, v132'); a(f'v_add_u32 v{BA}, s62, v{BA}')
    ACC=136; BB=168; AA=232
    def rdB(rl,d):
        r=BB+32*(rl%2)+4*d
        a(f'ds_read_b128 v[{r}:{r+3}], v{BA} offset:{512*(7-d)+64*rl}')
    def rdA(n):
        rl,k=divmod(n,8); r=AA+4*(n%5); o=KT+32*(rl+8*k)
        a(f'ds_read_b64 v[{r}:{r+1}], v{A1} offset:{o}'); a(f'ds_read_b64 v[{r+2}:{r+3}], v{A2} offset:{o}')
    rdA(0)
    for d in range(8): rdB(0,d)
    for n in range(1,4): rdA(n)
    for rl in range(4):
        for k in range(8):
            n=rl*8+k; r=AA+4*(n%5)
            for d in range(8-k):
                t=k+d; b=BB+32*(rl%2)+4*d
                C=f'v[{ACC+4*t}:{ACC+4*t+3}]' if not (rl==0 and k==0) else '0'
                a(f'v_mfma_f32_16x16x32_bf16 v[{ACC+4*t}:{ACC+4*t+3}], v[{r}:{r+3}], v[{b}:{b+3}], {C}')
                if d==0 and n+4<32: rdA(n+4)
                if rl<3 and k<4 and d in (1,2): rdB(rl+1,2*k+d-1)
    a('s_waitcnt lgkmcnt(0)')
    if other is None:
        a.label(f'L_cv_skip_{a.name}'); a.restore(st)
    else:
        a(f's_branch L_cv_join_{a.name}')
        a.label(f'L_cv_skip_{a.name}'); a.restore(st); other(a); a.label(f'L_cv_join_{a.name}')
    stamp(a,ts)
    a('s_barrier')
    a(f's_cmp_ge_u32 s{sWV}, 4'); a(f's_cbranch_scc1 L_cv_s2_{a.name}')
    st=a.save()
    a('v_lshrrev_b32 v131, 4, v1'); a('v_lshlrev_b32 v132, 4, v1'); a('v_lshl_add_u32 v132, v131, 6, v132')
    a(f's_mul_i32 s60, s{sWV}, 10240'); a('v_add_u32 v132, s60, v132')
    for t in range(8): a(f'ds_write_b128 v132, v[{ACC+4*t}:{ACC+4*t+3}] offset:{1280*t}')
    a('s_waitcnt lgkmcnt(0)')
    a.label(f'L_cv_s2_{a.name}'); a.restore(st)
    a('v_and_b32 v131, 3, v1'); a('v_mul_u32_u24 v131, 320, v131'); a('v_lshrrev_b32 v132, 2, v1'); a('v_lshl_add_u32 v131, v132, 4, v131')
    a(f's_mul_i32 s60, s{sWV}, 1280'); a('v_add_u32 v131, s60, v131')
    a('v_lshrrev_b32 v132, 4, v1'); a(f's_lshl_b32 s60, s{sWV}, 2'); a('v_add_u32 v132, s60, v132'); a('v_mul_u32_u24 v132, 57344, v132')
    a('v_and_b32 v133, 15, v1'); a('v_lshl_add_u32 v132, v133, 4, v132')
    a(f's_lshl_b32 s60, s{sP}, 8'); a(f's_add_u32 s60, s60, {WS_SP}')
    a('s_barrier')
    for w in range(4): a(f'ds_read_b128 v[{136+4*w}:{139+4*w}], v131 offset:{10240*w}')
    for k in range(4): a(f'v_add_f32 v{136+k}, v{136+k}, v{140+k}')
    for k in range(4): a(f'v_add_f32 v{144+k}, v{144+k}, v{148+k}')
    for k in range(4): a(f'v_cvt_pk_bf16_f32 v{136+k}, v{136+k}, v{144+k}')
    a(f'buffer_store_dwordx4 v[136:139], v132, s[{WS}:{WS+3}], s60 offen sc1',tag='sst')
if __name__=='__main__':
    ts=True
    A=Asm(); a=A; a.name='A'
    prologue(a,None)
    a('s_cmp_lt_u32 s2, 32'); a('s_cbranch_scc1 L_ln')
    st=a.save()
    phase_g1(a,False,False)
    a('s_endpgm')
    a.label('L_ln'); a.restore(st)
    phase_ln(a,False)
    a.label('L_end_A'); a('s_endpgm')
    B=Asm(); a=B; a.name='B'
    prologue(a,None)
    a('s_cmp_lt_u32 s2, 32'); a('s_cbranch_scc1 L_end_B')
    stamp(a,ts)
    kgen_loads(a); ur_load(a)
    a('s_waitcnt vmcnt(0) lgkmcnt(0)'); stamp(a,ts)
    phase_kgen(a,ts)
    ur_write(a)
    a('s_waitcnt lgkmcnt(0)'); a('s_barrier'); stamp(a,ts)
    phase_conv(a,ts,False)
    stamp(a,ts)
    if ts: stamps_out(a,0)
    a.label('L_end_B'); a('s_endpgm')
    open(sys.argv[1],'w').write(make_file([('ka_kernel',256,512,LDS_TOTAL),('kb_kernel',256,512,LDS_TOTAL)],[('ka_kernel',A,256,256),('kb_kernel',B,256,256)]))
    print('nops',B.nops,'lines',len(B.L))
```

```python
from gen2 import *
import os
sRB2,sCB,sR2,sM2,sK2=98,99,100,101,38
MP=49152; MPS=17472; SS=0
def g2_ids(a):
    a(f's_mul_i32 s60, s{sI}, 37'); a('s_lshr_b32 s60, s60, 8')
    a('s_mul_i32 s61, s60, 7'); a(f's_sub_u32 s{sCB}, s{sI}, s61')
    a(f's_lshl_b32 s{sRB2}, s{sXCD}, 2'); a(f's_add_u32 s{sRB2}, s{sRB2}, s60')
    a(f's_lshl_b32 s{sR2}, s{sCB}, 2'); a(f's_add_u32 s{sR2}, s{sR2}, s61'); a(f's_cmp_ge_u32 s{sR2}, 28'); a('s_cselect_b32 s62, 28, 0'); a(f's_sub_u32 s{sR2}, s{sR2}, s62')
def w2_setup(a,vw,vt):
    g2_ids(a)
    a(f's_lshr_b32 s60, s{sWV}, 1'); a(f's_mul_i32 s61, s60, {28*16}'); a(f's_and_b32 s62, s{sWV}, 1'); a('s_lshl_b32 s62, s62, 3'); a('s_add_u32 s61, s61, s62')
    a(f'v_lshrrev_b32 v{vw}, 3, v1'); a(f'v_add_u32 v{vw}, s61, v{vw}'); a(f'v_mul_u32_u24 v{vw}, 896, v{vw}')
    a(f'v_lshrrev_b32 v{vt}, 2, v1'); a(f'v_and_b32 v{vt}, 4, v{vt}'); a(f'v_xor_b32 v{vt}, v{vt}, v1'); a(f'v_and_b32 v{vt}, 7, v{vt}')
    a(f'v_lshl_add_u32 v{vw}, v{vt}, 4, v{vw}'); a(f's_lshl_b32 s61, s{sCB}, 7'); a(f'v_add_u32 v{vw}, s61, v{vw}')
    a(f's_lshl_b32 s{sM2}, s{sWV}, 10')
    a(f's_mul_i32 s{sK2}, s{sR2}, 14336')
    t=vt+1
    a(f'v_bfe_u32 v{t}, v1, 2, 2'); a(f'v_lshrrev_b32 v{vt}, 5, v1'); a(f'v_lshl_add_u32 v{vt}, v{vt}, 2, v{t}'); a(f'v_lshlrev_b32 v{vt}, 7, v{vt}')
    a(f'v_lshrrev_b32 v{t}, 1, v{t}'); a(f'v_lshl_add_u32 v{vt}, v{t}, 6, v{vt}')
    a(f'v_bfe_u32 v{t}, v1, 4, 1'); a(f'v_lshl_add_u32 v{vt}, v{t}, 5, v{vt}')
    a(f'v_and_b32 v{t}, 3, v1'); a(f'v_lshl_add_u32 v{vt}, v{t}, 3, v{vt}')
    a('s_lshl_b32 s60, s60, 11'); a(f'v_add_u32 v{vt}, s60, v{vt}'); a(f'v_xor_b32 v{t}, 64, v{vt}')
def w2_dma1(a,vw,lds,tag):
    a(f's_add_u32 m0, s{sM2}, {lds}')
    a(f'buffer_load_dwordx4 v{vw}, s[{W2}:{W2+3}], s{sK2} offen lds',tag=tag)
    a(f's_add_u32 s{sK2}, s{sK2}, 14336'); a(f's_cmp_eq_u32 s{sK2}, {28*14336}'); a(f's_cselect_b32 s{sK2}, 0, s{sK2}')
def w2_rd(vb,dst,off):
    L=[]
    for dt in range(2):
        for j in range(2):
            r=dst+4*dt+2*j
            L.append(f'ds_read_b64_tr_b16 v[{r}:{r+1}], v{vb+dt} offset:{off+1024*j}')
    return L
def w2_toreg(a,vt,base,s0,n,tmp):
    a(f'v_add_u32 v{tmp}, {base}, v{vt}'); a(f'v_add_u32 v{tmp+1}, {base}, v{vt+1}')
    for s in range(n):
        for x in w2_rd(tmp,16+8*(s0+s),8192*s): a(x)
def final_loads(a):
    a('v_and_b32 v246, 31, v0'); a('v_lshrrev_b32 v247, 5, v0')
    a(f's_lshl_b32 s60, s{sRB2}, 6'); a('v_lshl_add_u32 v245, v247, 2, s60'); a('v_mul_u32_u24 v245, 896, v245')
    a(f's_lshl_b32 s60, s{sCB}, 7'); a('v_lshl_add_u32 v246, v246, 2, s60'); a('v_add_u32 v245, v245, v246')
    for i in range(4): a(f'buffer_load_dword v{240+i}, v245, s[{X_}:{X_+3}], 0 offen offset:{896*i}')
    srd(a,MS,54,896)
    a(f'buffer_load_dword v244, v246, s[{MS}:{MS+3}], 0 offen')
NH=10
def phase_g2(a,ts,vt,fused,s_wait=None):
    ACC=128; HR=160; BR=200
    sH=39
    a(f's_and_b32 s60, s{sWV}, 1'); a(f's_lshl_b32 s61, s{sRB2}, 1'); a('s_add_u32 s60, s60, s61'); a('s_mul_i32 s60, s60, 112')
    a(f's_lshr_b32 s61, s{sWV}, 1'); a('s_mul_i32 s61, s61, 28'); a('s_add_u32 s60, s60, s61'); a('s_lshl_b32 s60, s60, 10')
    a('v_lshlrev_b32 v7, 4, v1'); a('v_add_u32 v7, s60, v7')
    a(f's_add_u32 s{sH}, s{sR2}, 14'); a(f's_cmp_ge_u32 s{sH}, 28'); a('s_cselect_b32 s62, 28, 0'); a(f's_sub_u32 s{sH}, s{sH}, s62'); a(f's_lshl_b32 s{sH}, s{sH}, 10')
    def hld(n):
        r=HR+4*(n%NH)
        return [f'buffer_load_dwordx4 v[{r}:{r+3}], v7, s[{WS}:{WS+3}], s{sH} offen sc1',
                f's_add_u32 s{sH}, s{sH}, 1024', f's_cmp_eq_u32 s{sH}, {28*1024}', f's_cselect_b32 s{sH}, 0, s{sH}']
    for n in range(NH):
        for x in hld(n): a(x)
    a(f'v_add_u32 v8, {W2R}, v{vt}'); a(f'v_add_u32 v9, {W2R}, v{vt+1}'); a(f'v_add_u32 v10, {STG2}, v{vt}'); a(f'v_add_u32 v11, {STG2}, v{vt+1}')
    def brd(n):
        return w2_rd(8 if n<8 else 10, BR+8*(n%4), 8192*(n%8))
    a.wait_vm('w2r'); a('s_barrier')
    stamp(a,ts)
    for n in range(3):
        for x in brd(n): a(x)
    for n in range(28):
        h=HR+4*(n%NH); b=BR+8*(n%4) if n<14 else 16+8*(n-14)
        for dt in range(2):
            c=ACC+16*dt
            a(f'v_mfma_f32_32x32x16_bf16 v[{c}:{c+15}], v[{h}:{h+3}], v[{b+4*dt}:{b+4*dt+3}], {f"v[{c}:{c+15}]" if n else "0"}')
            if dt==0 and n+3<14:
                for x in brd(n+3): a(x)
        if n+NH<28:
            for x in hld(n+NH): a(x)
        if n==14:
            a('s_barrier')
        if n==18:
            if s_wait: s_wait(a)
            a(f's_mul_i32 s60, s{sRB2}, 57344'); a(f's_lshl_b32 s61, s{sCB}, 13'); a('s_add_u32 s60, s60, s61'); a(f's_add_u32 s60, s60, {WS_SP}')
            a('v_lshlrev_b32 v12, 4, v0')
            a(f'buffer_load_dwordx4 v[232:235], v12, s[{WS}:{WS+3}], s60 offen sc1')
            a('v_lshrrev_b32 v13, 4, v0'); a('v_lshl_add_u32 v12, v13, 4, v12')
    stamp(a,ts)
    a('v_and_b32 v13, 1, v1'); a(f'v_mul_u32_u24 v13, {32*272+64}, v13'); a('v_bfe_u32 v14, v1, 1, 4'); a('v_mul_u32_u24 v14, 272, v14'); a('v_add_u32 v13, v13, v14')
    a('v_lshrrev_b32 v14, 5, v1'); a('v_lshl_add_u32 v13, v14, 4, v13')
    a(f's_lshr_b32 s60, s{sWV}, 1'); a(f's_mul_i32 s60, s60, {MPS}'); a(f's_and_b32 s61, s{sWV}, 1'); a('s_lshl_b32 s61, s61, 7'); a('s_add_u32 s60, s60, s61')
    a(f's_add_u32 s60, s60, {MP}'); a('v_add_u32 v13, s60, v13')
    for dt in range(2):
        for u in range(4):
            r=ACC+16*dt+4*u
            a(f'ds_write_b128 v13, v[{r}:{r+3}] offset:{dt*16*272+32*u}')
    a(f'ds_write_b128 v12, v[232:235] offset:{SS}')
    a('v_and_b32 v13, 31, v0'); a('v_mul_u32_u24 v13, 272, v13'); a('v_lshrrev_b32 v14, 5, v0'); a('v_lshl_add_u32 v13, v14, 4, v13')
    a(f'v_add_u32 v14, {MP}, v13')
    a('s_waitcnt lgkmcnt(0)'); a('s_barrier')
    for kq in range(4):
        for o in range(2):
            r=160+8*kq+4*o
            a(f'ds_read_b128 v[{r}:{r+3}], v14 offset:{kq*MPS+o*(32*272+64)}')
    a(f'ds_read_b128 v[232:235], v13 offset:{SS}')
    a('v_lshlrev_b32 v246, 16, v244'); a('v_and_b32 v247, 0xffff0000, v244')
    for k in range(8): a(f'v_add_f32 v{160+k}, v{160+k}, v{168+k}')
    for k in range(8): a(f'v_add_f32 v{176+k}, v{176+k}, v{184+k}')
    for k in range(8): a(f'v_add_f32 v{160+k}, v{160+k}, v{246+k//4}')
    for k in range(8): a(f'v_add_f32 v{160+k}, v{160+k}, v{176+k}')
    for k in range(8): a(f'v_mul_f32 v{168+k}, {f2u(-math.log2(math.e))}, v{160+k}')
    for k in range(8): a(f'v_exp_f32 v{168+k}, v{168+k}')
    for i in range(4): a(f'v_lshlrev_b32 v{176+i}, 16, v{232+i}'); a(f'v_and_b32 v{180+i}, 0xffff0000, v{232+i}')
    for k in range(8): a(f'v_add_f32 v{168+k}, 1.0, v{168+k}')
    for k in range(8): a(f'v_rcp_f32 v{168+k}, v{168+k}')
    for i in range(4): a(f'v_lshlrev_b32 v{184+i}, 16, v{240+i}'); a(f'v_and_b32 v{188+i}, 0xffff0000, v{240+i}')
    for k in range(8): a(f'v_mul_f32 v{160+k}, v{160+k}, v{176+k}')
    for i in range(4):
        a(f'v_fmac_f32 v{184+i}, v{160+i}, v{168+i}'); a(f'v_fmac_f32 v{188+i}, v{164+i}, v{172+i}')
        a(f'v_cvt_pk_bf16_f32 v{184+i}, v{184+i}, v{188+i}')
        a(f'buffer_store_dword v{184+i}, v245, s[{OUT}:{OUT+3}], 0 offen offset:{896*i}')
if __name__=='__main__':
    ts=int(os.environ.get("TS","1"))
    A=Asm(); a=A; a.name='A'
    prologue(a,None)
    a('s_cmp_lt_u32 s2, 32'); a('s_cbranch_scc1 L_ln')
    st=a.save()
    phase_g1(a,False,False)
    a('s_endpgm')
    a.label('L_ln'); a.restore(st)
    phase_ln(a,False)
    a.label('L_end_A'); a('s_endpgm')
    B=Asm(); a=B; a.name='B'
    prologue(a,None)
    a('s_cmp_lt_u32 s2, 32'); a('s_cbranch_scc1 L_end_B')
    kgen_loads(a); ur_load(a)
    phase_kgen(a,False)
    ur_write(a)
    a('s_waitcnt lgkmcnt(0)'); a('s_barrier')
    phase_conv(a,False,False)
    a.label('L_end_B'); a('s_endpgm')
    C=Asm(); a=C; a.name='C'
    prologue(a,None)
    a('s_cmp_lt_u32 s2, 32'); a('s_cbranch_scc1 L_end_C')
    stamp(a,ts)
    w2_setup(a,4,5)
    for s in range(8): w2_dma1(a,4,STG1+8192*s,'s1')
    for s in range(6): w2_dma1(a,4,STG2+8192*s,'s2')
    final_loads(a)
    a.wait_vm('s2'); a('s_barrier')
    w2_toreg(a,5,STG1,0,8,8); w2_toreg(a,5,STG2,8,6,10)
    a('s_waitcnt lgkmcnt(0)'); a('s_barrier')
    for s in range(14): w2_dma1(a,4,W2R+8192*s,'w2r')
    stamp(a,ts)
    phase_g2(a,ts,5,False)
    stamp(a,ts)
    if ts: stamps_out(a,0)
    a.label('L_end_C'); a('s_endpgm')
    open(sys.argv[1],'w').write(make_file([(n,256,512,LDS_TOTAL) for n in ('ka_kernel','kb_kernel','kc_kernel')],[('ka_kernel',A,256,256),('kb_kernel',B,256,256),('kc_kernel',C,256,256)]))
    print('nops',C.nops,'lines',len(C.L))
```

```python
import sys, math
sys.path.insert(0,'work')
from al import *
WS_H=0; WS_UR=0x800000; WS_SP=0xA00000; WS_TS=0xE00000
X_,W1,W2,WS,OUT,DBG,MS=8,12,16,20,24,28,32
sWV,sXCD,sI,sRB,sFS,sROT,sLT,sFH=3,40,41,42,43,44,45,46
LDS_TOTAL=163840
def f2u(x):
    import struct; return '0x%08x'%struct.unpack('<I',struct.pack('<f',x))[0]
NST=[0]
def stamp(a,on=True):
    if not on: return
    k=NST[0]; NST[0]+=1
    a(f's_memtime s[{64+2*k}:{65+2*k}]')
def stamps_out(a,base):
    n=NST[0]
    a('s_waitcnt vmcnt(0) lgkmcnt(0)')
    a(f's_lshl_b32 s60, s2, 3'); a(f's_add_u32 s60, s60, s{sWV}'); a('s_lshl_b32 s60, s60, 7'); a(f's_add_u32 s60, s60, {WS_TS+base}')
    a('s_mov_b64 s[62:63], exec'); a('s_mov_b64 exec, 1')
    a('v_mov_b32 v2, 0')
    for k in range(n):
        a(f'v_mov_b32 v3, s{64+2*k}')
        a(f'buffer_store_dword v3, v2, s[{WS}:{WS+3}], s60 offen offset:{4*k}')
    a('s_mov_b64 exec, s[62:63]')
    a('s_waitcnt vmcnt(0)')
    NST[0]=0
def prologue(a,need):
    a('s_cmp_ge_u32 s2, 256'); a('s_cbranch_scc1 L_end_%s'%a.name)
    a('s_getpc_b64 s[60:61]'); a.label('L_pc_%s'%a.name)
    a('s_load_dwordx2 s[4:5], s[0:1], 0'); a('s_load_dwordx4 s[48:51], s[0:1], 80'); a('s_load_dwordx4 s[52:55], s[0:1], 96')
    a('s_load_dwordx4 s[56:59], s[0:1], 112'); a('s_load_dwordx2 s[6:7], s[0:1], 128')
    a('v_lshlrev_b32 v2, 6, v0'); a(f'v_min_u32 v2, L_end_{a.name}-L_pc_{a.name}, v2')
    a('global_load_dword v255, v2, s[60:61]')
    a('v_lshrrev_b32 v1, 6, v0'); a(f'v_readfirstlane_b32 s{sWV}, v1'); a('v_and_b32 v1, 63, v0')
    a(f's_and_b32 s{sXCD}, s2, 7'); a(f's_lshr_b32 s{sI}, s2, 3'); a(f's_sub_u32 s{sI}, s{sI}, 4')
    srd(a,X_,4,1835008); srd(a,W1,48,1605632); srd(a,WS,6,268435456); srd(a,W2,52,1605632)
    srd(a,OUT,56,1835008); srd(a,DBG,58,256)
def bf16r(a,d,s):
    a(f'v_cvt_pk_bf16_f32 v{d}, v{s}, v{s}'); a(f'v_lshlrev_b32 v{d}, 16, v{d}')
def weave(a,mf,va):
    n=len(mf); k=0
    for i,m in enumerate(mf):
        for x in (m if isinstance(m,list) else [m]): a(x)
        e=(len(va)*(i+1)+n-1)//n
        while k<min(e,len(va)): a(va[k]); k+=1
    while k<len(va): a(va[k]); k+=1
def poll_issue(a,srdb,soff,vd):
    a(f'buffer_load_dword {vd}, off, s[{srdb}:{srdb+3}], {soff} sc1')
def poll(a,srdb,soff,target,vd,name,first=True):
    if not first: poll_issue(a,srdb,soff,vd)
    a(f'v_readfirstlane_b32 s62, {vd}'); a(f's_cmp_ge_u32 s62, {target}'); a(f's_cbranch_scc1 L_pd_{name}')
    st=a.save()
    a('s_mov_b32 s63, 0')
    a.label(f'L_pl_{name}')
    poll_issue(a,srdb,soff,vd); a('s_waitcnt vmcnt(0)')
    a(f'v_readfirstlane_b32 s62, {vd}'); a(f's_cmp_ge_u32 s62, {target}'); a(f's_cbranch_scc1 L_pd_{name}')
    a('s_add_u32 s63, s63, 1'); a('s_cmp_lt_u32 s63, 20000'); a(f's_cbranch_scc1 L_pl_{name}')
    a.label(f'L_pd_{name}'); a.restore(st)
def flag_init(a):
    a('s_cmp_lg_u32 s2, 0'); a('s_cbranch_scc1 L_noinit'); a(f's_cmp_lg_u32 s{sWV}, 0'); a('s_cbranch_scc1 L_noinit')
    st=a.save()
    a(f's_mov_b64 exec, {(1<<NFL)-1}'); a('v_lshlrev_b32 v2, 8, v1'); a('v_mov_b32 v3, 0'); a(f's_mov_b32 s60, {WS_FL}')
    a(f'buffer_store_dword v3, v2, s[{WS}:{WS+3}], s60 offen sc1'); a('s_waitcnt vmcnt(0)')
    a('s_mov_b64 exec, 1'); a('v_mov_b32 v3, 1'); a(f'buffer_store_dword v3, off, s[{DBG}:{DBG+3}], 0 sc1')
    a('s_mov_b64 exec, -1'); a('s_waitcnt vmcnt(0)')
    a.label('L_noinit'); a.restore(st)
def flag_add(a,soff):
    a('s_mov_b64 exec, 1'); a('v_mov_b32 v3, 1')
    a(f'buffer_atomic_add v3, off, s[{WS}:{WS+3}], {soff} sc1')
    a('s_mov_b64 exec, -1')
def phase_ln(a,fused):
    XS=960; TB=61440; TS=144
    a('v_lshrrev_b32 v2, 3, v1'); a(f's_lshl_b32 s60, s{sWV}, 3'); a('v_add_u32 v2, s60, v2')
    a('s_lshl_b32 s61, s2, 6'); a('v_add_u32 v3, s61, v2'); a('v_mul_u32_u24 v3, 896, v3')
    a('v_and_b32 v4, 7, v1'); a('v_lshl_add_u32 v3, v4, 4, v3')
    for j in range(7): a(f'buffer_load_dwordx4 v[{16+4*j}:{19+4*j}], v3, s[{X_}:{X_+3}], 0 offen offset:{128*j}')
    a('v_sub_u32 v5, 63, v2'); a(f'v_mul_u32_u24 v5, {XS}, v5'); a('v_lshl_add_u32 v5, v4, 4, v5')
    a('v_bfe_u32 v6, v1, 2, 2'); a('v_add_u32 v6, s60, v6'); a(f'v_mul_u32_u24 v6, {XS}, v6')
    a('v_lshrrev_b32 v7, 4, v1'); a('v_lshl_add_u32 v6, v7, 5, v6'); a('v_and_b32 v7, 3, v1'); a('v_lshl_add_u32 v6, v7, 3, v6')
    a(f'v_mul_u32_u24 v7, {TS}, v1'); a(f's_lshl_b32 s60, s{sWV}, 4'); a(f's_add_u32 s60, s60, {TB}'); a('v_add_u32 v7, s60, v7')
    a('v_lshrrev_b32 v8, 3, v0'); a(f'v_mul_u32_u24 v9, {TS}, v8'); a('v_lshl_add_u32 v9, v4, 4, v9'); a(f'v_add_u32 v9, {TB}, v9')
    a('v_lshlrev_b32 v8, 12, v8'); a('v_lshl_add_u32 v8, v4, 4, v8')
    for k in range(4): a(f'v_mov_b32 v{10+k}, 0')
    a('s_mov_b32 s62, 0xffff0000')
    for k in range(28):
        lo,hi=48+2*k,49+2*k
        a(f'v_lshlrev_b32 v{lo}, 16, v{16+k}'); a(f'v_and_b32 v{hi}, s62, v{16+k}')
        a(f'v_add_f32 v10, v10, v{lo}'); a(f'v_add_f32 v11, v11, v{hi}')
        a(f'v_fmac_f32 v12, v{lo}, v{lo}'); a(f'v_fmac_f32 v13, v{hi}, v{hi}')
    a('v_add_f32 v10, v10, v11'); a('v_add_f32 v12, v12, v13')
    for m in ('quad_perm:[1,0,3,2]','quad_perm:[2,3,0,1]','row_half_mirror'):
        a(f'v_add_f32_dpp v10, v10, v10 {m} row_mask:0xf bank_mask:0xf')
        a(f'v_add_f32_dpp v12, v12, v12 {m} row_mask:0xf bank_mask:0xf')
    a(f'v_mul_f32 v10, {f2u(1/448)}, v10'); a(f'v_mul_f32 v12, {f2u(1/448)}, v12')
    a('v_fma_f32 v12, -v10, v10, v12'); a('v_max_f32 v12, 0, v12')
    bf16r(a,12,12); a(f'v_add_f32 v12, {f2u(1e-5)}, v12'); bf16r(a,12,12); a('v_sqrt_f32 v12, v12'); bf16r(a,12,12)
    a('v_rcp_f32 v12, v12'); bf16r(a,10,10); a('v_mul_f32 v10, v10, v12'); a('v_sub_f32 v10, 0, v10')
    for j in range(7):
        for e in range(4):
            k=4*j+e; lo,hi=48+2*k,49+2*k
            a(f'v_fma_f32 v{lo}, v{lo}, v12, v10'); a(f'v_fma_f32 v{hi}, v{hi}, v12, v10')
            a(f'v_cvt_pk_bf16_f32 v{16+k}, v{lo}, v{hi}')
        a(f'ds_write_b128 v5, v[{16+4*j}:{19+4*j}] offset:{128*j}')
    a('s_waitcnt lgkmcnt(0)'); a('s_barrier')
    for j in range(7):
        a(f'ds_read_b64_tr_b16 v[{16+4*j}:{17+4*j}], v6 offset:{128*j}')
        a(f'ds_read_b64_tr_b16 v[{18+4*j}:{19+4*j}], v6 offset:{128*j+4*XS}')
    for j in range(7): a(f'ds_write_b128 v7, v[{16+4*j}:{19+4*j}] offset:{64*TS*j}')
    a('s_waitcnt lgkmcnt(0)'); a('s_barrier')
    for j in range(7): a(f'ds_read_b128 v[{16+4*j}:{19+4*j}], v9 offset:{64*TS*j}')
    a('s_lshl_b32 s60, s2, 7'); a(f's_sub_u32 s60, {WS_UR+1984*2}, s60')
    for j in range(7):
        a(f'buffer_store_dwordx4 v[{16+4*j}:{19+4*j}], v8, s[{WS}:{WS+3}], s60 offen sc1')
        if j<6: a(f's_add_u32 s60, s60, {64*4096}')
    a('s_waitcnt vmcnt(0)')
    if fused:
        a('s_barrier')
        a(f's_cmp_lg_u32 s{sWV}, 0'); a('s_cbranch_scc1 L_end_%s'%a.name)
        poll(a,DBG,'0',1,'v2','i0',first=False)
        a('s_mov_b64 exec, 1'); a('v_mov_b32 v2, 0'); a('v_mov_b32 v3, 1'); a(f's_mov_b32 s60, {WS_FL+256*FL_UR}')
        a(f'buffer_atomic_add v3, v2, s[{WS}:{WS+3}], s60 offen sc1')
WS_FL=0xC00000
FL_UR=0; FL_H=1; FL_S=17; NFL=24
XR=16384; WR=81920; ST=0
def g1_ids(a):
    a(f's_mul_i32 s60, s{sI}, 37'); a('s_lshr_b32 s60, s60, 8')
    a('s_mul_i32 s61, s60, 7'); a(f's_sub_u32 s61, s{sI}, s61')
    a(f's_lshr_b32 s{sRB}, s{sXCD}, 1'); a(f's_lshl_b32 s{sRB}, s{sRB}, 2'); a(f's_add_u32 s{sRB}, s{sRB}, s60')
    a(f's_and_b32 s{sFS}, s{sXCD}, 1'); a(f's_mul_i32 s{sFS}, s{sFS}, 7'); a(f's_add_u32 s{sFS}, s{sFS}, s61')
    a(f's_add_u32 s{sROT}, s60, s61'); a(f's_cmp_ge_u32 s{sROT}, 7'); a('s_cselect_b32 s62, 7, 0'); a(f's_sub_u32 s{sROT}, s{sROT}, s62')
    a(f's_and_b32 s{sLT}, s{sWV}, 3'); a(f's_lshr_b32 s{sFH}, s{sWV}, 2')
sKX,sKW,sMX,sMW=47,36,37,38
def phase_g1(a,fused,ts,hook=None):
    g1_ids(a)
    a('v_lshrrev_b32 v5, 3, v1')
    a(f's_lshl_b32 s60, s{sRB}, 7'); a(f's_lshl_b32 s61, s{sWV}, 4'); a('s_add_u32 s60, s60, s61')
    a('v_add_u32 v6, s60, v5'); a('v_mul_u32_u24 v6, 896, v6')
    a('v_lshrrev_b32 v7, 4, v1'); a('v_xor_b32 v7, v7, v1'); a('v_and_b32 v7, 7, v7')
    if NOSW: a('v_and_b32 v7, 7, v1')
    a('v_lshl_add_u32 v2, v7, 4, v6')
    a('v_xor_b32 v7, 4, v7'); a('v_lshl_add_u32 v3, v7, 4, v6'); a(f'v_add_u32 v3, {8*896}, v3')
    a(f's_lshl_b32 s61, s{sWV}, 3'); a('v_add_u32 v6, s61, v5'); a('v_mul_u32_u24 v6, 3584, v6')
    a('v_lshrrev_b32 v7, 2, v1'); a('v_and_b32 v7, 4, v7'); a('v_xor_b32 v7, v7, v1'); a('v_and_b32 v7, 7, v7')
    a('v_lshl_add_u32 v4, v7, 4, v6'); a(f's_lshl_b32 s61, s{sFS}, 8'); a('v_add_u32 v4, s61, v4')
    a(f's_lshl_b32 s{sMX}, s{sWV}, 11'); a(f's_add_u32 s{sMX}, s{sMX}, {XR}')
    a(f's_lshl_b32 s{sMW}, s{sWV}, 10'); a(f's_add_u32 s{sMW}, s{sMW}, {WR}')
    a(f's_lshl_b32 s{sKX}, s{sROT}, 7')
    def adv(reg):
        a(f's_add_u32 s{reg}, s{reg}, 128'); a(f's_cmp_eq_u32 s{reg}, 896'); a(f's_cselect_b32 s{reg}, 0, s{reg}')
    def dma_x(c):
        a(f's_add_u32 m0, s{sMX}, {(c%4)*16384}')
        a(f'buffer_load_dwordx4 v2, s[{X_}:{X_+3}], s{sKX} offen lds',tag=f'u{c}')
        a(f's_add_u32 m0, s{sMX}, {(c%4)*16384+1024}')
        a(f'buffer_load_dwordx4 v3, s[{X_}:{X_+3}], s{sKX} offen lds',tag=f'u{c}')
    def dma_w(u):
        a(f's_mul_i32 s{sKW}, s{sKX}, {64*3584//128}')
        if u>=7: a(f's_add_u32 s{sKW}, s{sKW}, 128')
        a(f's_add_u32 m0, s{sMW}, {(u%10)*8192}')
        a(f'buffer_load_dwordx4 v4, s[{W1}:{W1+3}], s{sKW} offen lds',tag=f'u{u}')
        adv(sKX)
    for c in range(4): dma_x(c); dma_w(c)
    stamp(a,ts)
    srd(a,MS,50,3584)
    a('v_and_b32 v5, 31, v1'); a(f's_lshl_b32 s60, s{sFS}, 7'); a(f's_lshl_b32 s61, s{sFH}, 5'); a('s_add_u32 s60, s60, s61')
    a('v_add_lshl_u32 v6, v5, s60, 1')
    a(f'buffer_load_ushort v14, v6, s[{MS}:{MS+3}], 0 offen',tag='b1'); a(f'buffer_load_ushort v15, v6, s[{MS}:{MS+3}], 0 offen offset:128',tag='b1')
    a(f's_lshl_b32 s60, s{sRB}, 2'); a(f's_add_u32 s60, s60, s{sLT}'); a('s_mul_i32 s60, s60, 112')
    a(f's_lshl_b32 s61, s{sFS}, 3'); a('s_add_u32 s60, s60, s61'); a(f's_lshl_b32 s61, s{sFH}, 1'); a('s_add_u32 s60, s60, s61')
    a('s_lshl_b32 s60, s60, 10'); a('v_lshlrev_b32 v13, 4, v1'); a('v_add_u32 v13, s60, v13')
    a('v_lshrrev_b32 v10, 5, v1'); a('v_bfe_u32 v11, v1, 1, 3'); a('v_xor_b32 v11, v11, v10')
    a(f's_lshl_b32 s60, s{sFH}, 1'); a('v_xor_b32 v11, s60, v11'); a('v_lshlrev_b32 v11, 4, v11')
    a(f's_lshl_b32 s60, s{sLT}, 12'); a(f's_add_u32 s60, s60, {XR}')
    a('v_lshl_add_u32 v11, v5, 7, v11'); a('v_add_u32 v5, s60, v11')
    for ks in range(1,4): a(f'v_xor_b32 v{5+ks}, {32*ks}, v5')
    a('v_bfe_u32 v11, v1, 2, 2')
    a('v_lshl_add_u32 v12, v10, 3, v11'); a('v_lshlrev_b32 v12, 7, v12')
    a('v_lshrrev_b32 v11, 1, v11'); a(f'v_xor_b32 v11, s{sFH}, v11'); a('v_lshl_add_u32 v12, v11, 6, v12')
    a('v_bfe_u32 v11, v1, 4, 1'); a('v_lshl_add_u32 v12, v11, 5, v12')
    a('v_and_b32 v11, 3, v1'); a('v_lshl_add_u32 v12, v11, 3, v12')
    a(f's_lshl_b32 s60, s{sFH}, 11'); a(f's_add_u32 s61, s60, {WR}'); a('v_add_u32 v9, s61, v12')
    a(f's_sub_u32 s61, {WR+2048}, s60'); a('v_add_u32 v10, s61, v12')
    a('v_add_u32 v11, 40960, v9'); a('v_add_u32 v12, 40960, v10')
    AR=160; CS=192; ON=200; S1=204; T0=208; AP=212; BP=216; cA,cB,iR=220,221,222; G0=224; PK=240
    a('v_lshrrev_b32 v208, 2, v1'); a('v_and_b32 v208, 4, v208'); a('v_xor_b32 v208, v208, v1'); a('v_and_b32 v208, 7, v208')
    a('v_cmp_eq_u32 vcc, 0, v208'); a('v_mov_b32 v209, 0x3f803f80')
    a(f'v_cndmask_b32 v{ON}, 0, v209, vcc')
    for k in range(1,4): a(f'v_mov_b32 v{ON+k}, v{ON}')
    for k in range(4): a(f'v_mov_b32 v{S1+k}, 0')
    for k in (2,3): a(f'v_mov_b32 v{AP+k}, 0'); a(f'v_mov_b32 v{BP+k}, 0')
    a('s_mov_b32 s39, 0xffff0000')
    def reads(u):
        s=u%2; L=[]
        if u<7:
            for ks in range(4): L.append(f'ds_read_b128 v[{16+16*u+4*ks}:{19+16*u+4*ks}], v{5+ks} offset:{(u%4)*16384}')
        sl=u%10; hi=2 if sl>=5 else 0; off=(sl%5)*8192
        M=[]
        for ks in range(4):
            r=AR+16*s+4*ks; b=9+hi+(ks&1); o=off+(ks&2)*2048
            M.append(f'ds_read_b64_tr_b16 v[{r}:{r+1}], v{b} offset:{o}')
            M.append(f'ds_read_b64_tr_b16 v[{r+2}:{r+3}], v{b} offset:{o+512}')
        if u<7: return [x for ks in range(4) for x in (L[ks],M[2*ks],M[2*ks+1])]
        return M
    def mfmas(u):
        s=u%2; p=u//7; c=u%7; acc=128+16*p; cs=CS+4*p; out=[]
        for ks in range(4):
            r=AR+16*s+4*ks; x=16+16*c+4*ks
            C=f'v[{acc}:{acc+15}]' if (c or ks) else '0'
            C2=f'v[{cs}:{cs+3}]' if (c or ks) else '0'
            out.append(f'v_mfma_f32_32x32x16_bf16 v[{acc}:{acc+15}], v[{r}:{r+3}], v[{x}:{x+3}], {C}')
            if not NOCS: out.append(f'v_mfma_f32_16x16x32_bf16 v[{cs}:{cs+3}], v[{ON}:{ON+3}], v[{r}:{r+3}], {C2}')
        return out
    def stats(c):
        L=[]
        for ks in (0,2):
            for e in range(4):
                x=16+16*c+4*ks+e; t=T0+2*(e&1)
                L+= [f'v_lshlrev_b32 v{t}, 16, v{x}', f'v_and_b32 v{t+1}, s39, v{x}',
                     f'v_add_f32 v{S1}, v{S1}, v{t}', f'v_add_f32 v{S1+1}, v{S1+1}, v{t+1}',
                     f'v_fmac_f32 v{S1+2}, v{t}, v{t}', f'v_fmac_f32 v{S1+3}, v{t+1}, v{t+1}']
        return L
    def gelu(p):
        acc=128+16*p; L=[]
        for q in range(4):
            A=[acc+4*q+i for i in range(4)]; T=[G0+4*(q&1)+i for i in range(4)]
            L+=[f'v_mul_f32 v{t}, v{x}, v{x}' for t,x in zip(T,A)]
            L+=[f'v_fma_f32 v{t}, v{t}, v{cB}, v{cA}' for t in T]
            L+=[f'v_mul_f32 v{t}, v{x}, v{t}' for t,x in zip(T,A)]
            L+=[f'v_exp_f32 v{t}, v{t}' for t in T]
            L+=[f'v_fma_f32 v{t}, v{t}, v{iR}, v{iR}' for t in T]
            L+=[f'v_rcp_f32 v{t}, v{t}' for t in T]
            L+=[f'v_mul_f32 v{t}, v{x}, v{t}' for t,x in zip(T,A)]
            pk=PK+8*p+2*q
            L+=[f'v_cvt_pk_bf16_f32 v{pk}, v{T[0]}, v{T[1]}', f'v_cvt_pk_bf16_f32 v{pk+1}, v{T[2]}, v{T[3]}']
            if q&1:
                b=PK+8*p+4*(q>>1)
                L.append(f'buffer_store_dwordx4 v[{b}:{b+3}], v13, s[{WS}:{WS+3}], s{60+2*p+(q>>1)} offen sc1')
        return L
    a.gelu=gelu
    def aprime(p):
        cs=CS+4*p
        return [f'v_cvt_pk_bf16_f32 v{T0}, v{cs}, v{cs}', f'v_lshlrev_b32 v{T0+1}, 16, v{T0}', f'v_sub_f32 v{T0+1}, v{cs}, v{T0+1}',
                f'v_cvt_pk_bf16_f32 v{AP}, v{cs}, v{T0+1}', f'v_and_b32 v{T0}, 0xffff, v{T0}', f'v_lshl_or_b32 v{AP+1}, v{14+p}, 16, v{T0}',
                f'v_mfma_f32_32x32x16_bf16 v[{128+16*p}:{143+16*p}], v[{AP}:{AP+3}], v[{BP}:{BP+3}], v[{128+16*p}:{143+16*p}]']
    sched={1:[('x',4),('w',4)],2:[('x',5),('w',5)],3:[('x',6),('w',6)],4:[('w',7),('w',8),('w',9)],5:[('w',10),('w',11),('w',12)],6:[('w',13)]}
    G=None
    for u in range(15):
        if u<14:
            a.wait_vm(f'u{u}'); a('s_waitcnt lgkmcnt(0)')
            if not (NOBAR and u>8): a('s_barrier')
            if u==0: stamp(a,ts)
            if u==7 or u==9: stamp(a,ts)
            for k,c in sched.get(u,[]): (dma_x if k=='x' else dma_w)(c)
            if hook: hook(a,u)
            rd=reads(u)
        else: rd=[]
        va=[]
        if u==8:
            a('v_and_b32 v208, 31, v1'); a(f's_lshl_b32 s60, s{sLT}, 9'); a('v_lshlrev_b32 v208, 3, v208'); a('v_add_u32 v208, s60, v208')
            for k,o in enumerate((0,256,2048,2304)): a(f'ds_read_b64 v[{G0+2*k}:{G0+2*k+1}], v208 offset:{ST+o}')
        if u>=1:
            mf=mfmas(u-1)
            if u-1<7: va=stats(u-1)
            if u-1<7 and NOST: va=[]
            if u-1<7 and NOMF: mf=['s_nop 0']*4
            if u==8:
                g=G0
                va=[f'v_add_f32 v{g}, v{g}, v{g+2}',f'v_add_f32 v{g+1}, v{g+1}, v{g+3}',f'v_add_f32 v{g+4}, v{g+4}, v{g+6}',f'v_add_f32 v{g+5}, v{g+5}, v{g+7}',
                    f'v_add_f32 v{g}, v{g}, v{g+4}',f'v_add_f32 v{g+1}, v{g+1}, v{g+5}',
                    f'v_mul_f32 v{g}, {f2u(-1/448)}, v{g}', f'v_mul_f32 v{g+1}, {f2u(1/448)}, v{g+1}',
                    f'v_fma_f32 v{g+1}, -v{g}, v{g}, v{g+1}', f'v_max_f32 v{g+1}, 0, v{g+1}']
                def r16(d,s): return [f'v_cvt_pk_bf16_f32 v{d}, v{s}, v{s}', f'v_lshlrev_b32 v{d}, 16, v{d}']
                va+=r16(g+2,g+1)+[f'v_add_f32 v{g+2}, {f2u(1e-5)}, v{g+2}']+r16(g+2,g+2)+[f'v_sqrt_f32 v{g+2}, v{g+2}']+r16(g+2,g+2)
                va+=[f'v_rcp_f32 v{g+3}, v{g+2}', f'v_mul_f32 v{g+1}, v{g+1}, v{g+3}', f'v_mul_f32 v{g+1}, v{g+1}, v{g+3}']
                va+=r16(g+1,g+1)+[f'v_add_f32 v{g+1}, {f2u(1e-5)}, v{g+1}']+r16(g+1,g+1)+[f'v_sqrt_f32 v{g+1}, v{g+1}']+r16(g+1,g+1)
                va+=[f'v_mul_f32 v{iR}, v{g+1}, v{g+2}', f'v_rcp_f32 v{g+3}, v{iR}']
                c0=-2*math.sqrt(2/math.pi)*math.log2(math.e); c1=c0*0.044715
                va+=[f'v_mul_f32 v{cA}, {f2u(c0)}, v{g+3}', f'v_mul_f32 v{cB}, v{g+3}, v{g+3}', f'v_mul_f32 v{cB}, v{cB}, v{g+3}', f'v_mul_f32 v{cB}, {f2u(c1)}, v{cB}']
                va+=[f'v_cmp_gt_u32 vcc, 32, v1',
                     f'v_cvt_pk_bf16_f32 v{g+4}, v{g}, v{g}', f'v_lshlrev_b32 v{g+5}, 16, v{g+4}', f'v_sub_f32 v{g+5}, v{g}, v{g+5}',
                     f'v_cvt_pk_bf16_f32 v{g+6}, v{iR}, v{iR}', f'v_lshlrev_b32 v{g+6}, 16, v{g+6}', f'v_sub_f32 v{g+7}, v{iR}, v{g+6}',
                     f'v_cndmask_b32 v{BP}, 0, v{g+4}, vcc', f'v_cndmask_b32 v{g+5}, 0, v{g+5}, vcc', f'v_cndmask_b32 v{g+6}, v{g+7}, v{g+6}, vcc',
                     f'v_cvt_pk_bf16_f32 v{BP+1}, v{g+5}, v{g+6}']
                va+=aprime(0)
                for k in range(4): va.append(f's_mov_b32 s{60+k}, {(4*(k>>1)+(k&1))*1024}')
                G=gelu(0)
            if u>=9:
                n=(len(G)+(14-u))//(15-u); va=G[:n]; G=G[n:]
                if NOG: va=[]
                if NORD: rd=[]
            mf2=[]
            for k,m in enumerate(mf):
                it=[m]
                take=(len(rd)+ (NG-1-k))//(NG-k) if k<NG else 0
                it+=rd[:take]; rd=rd[take:]
                mf2.append(it)
            weave(a,mf2,va)
            if u==7:
                a(f'v_add_f32 v{S1}, v{S1}, v{S1+1}'); a(f'v_add_f32 v{S1+1}, v{S1+2}, v{S1+3}')
                a(f's_lshl_b32 s60, s{sWV}, 9'); a('v_lshlrev_b32 v208, 3, v1'); a('v_add_u32 v208, s60, v208')
                a(f'ds_write_b64 v208, v[{S1}:{S1+1}] offset:{ST}')
        else:
            for x in rd: a(x)
    stamp(a,ts)
    for x in aprime(1): a(x)
    if hook: hook(a,'tail')
    else:
        for x in gelu(1): a(x)
    stamp(a,ts)
import os
NG=int(os.environ.get('NG','4'))
NOBAR=int(os.environ.get('NOBAR','0'))
NOG=int(os.environ.get('NOG','0'))
NORD=int(os.environ.get('NORD','0'))
NOSW=int(os.environ.get('NOSW','0'))
NOST=int(os.environ.get('NOST','0'))
NOMF=int(os.environ.get('NOMF','0'))
NOCS=int(os.environ.get('NOCS','0'))
if __name__=='__main__':
    ts=True
    a=Asm(); a.name='A'
    prologue(a,None)
    a('s_cmp_lt_u32 s2, 32'); a('s_cbranch_scc1 L_ln')
    stamp(a,ts)
    st=a.save()
    phase_g1(a,False,ts)
    a('s_waitcnt vmcnt(0)'); stamp(a,ts)
    if ts: stamps_out(a,0)
    a('s_endpgm')
    a.label('L_ln'); a.restore(st)
    phase_ln(a,False)
    a.label('L_end_A'); a('s_endpgm')
    open(sys.argv[1],'w').write(make_file([(KN,256,512,LDS_TOTAL)],[(KN,a,256,256)]))
    print('nops',a.nops,'lines',len(a.L))
```

```python
from gen import *
KT=0; UR=33280; SCR=45056; W2R=49152; STG1=16384; STG2=114688
sP,sCH,sNQ=56,57,58
def cmul(a,d,x,y,t=166):
    a(f'v_pk_mul_f32 v[{t}:{t+1}], v[{x}:{x+1}], v[{y}:{y+1}] op_sel:[1,1] op_sel_hi:[1,0]')
    a(f'v_pk_fma_f32 v[{d}:{d+1}], v[{x}:{x+1}], v[{y}:{y+1}], v[{t}:{t+1}] op_sel:[0,0,0] op_sel_hi:[0,1,1] neg_lo:[0,0,1]')
def kgen_loads(a):
    a('s_load_dwordx8 s[80:87], s[0:1], 8'); a('s_load_dwordx8 s[88:95], s[0:1], 40')
    a(f's_sub_u32 s{sP}, s2, 32'); a(f's_lshr_b32 s{sCH}, s{sWV}, 2'); a(f's_and_b32 s{sNQ}, s{sWV}, 3')
    a(f's_lshl_b32 s60, s{sP}, 10'); a('v_lshlrev_b32 v238, 1, v0'); a('v_add_u32 v238, s60, v238')
    for k in range(6): a(f'global_load_ushort v{232+k}, v238, s[{80+2*k}:{81+2*k}]')
    a(f's_lshl_b32 s60, s{sP}, 2')
    a('s_load_dword s96, s[92:93], s60'); a('s_load_dword s97, s[94:95], s60')
def ur_load(a):
    a(f's_lshl_b32 s60, s{sP}, 13'); a(f's_add_u32 s60, s60, {WS_UR}'); a('v_lshlrev_b32 v248, 4, v0')
    a(f'buffer_load_dwordx4 v[252:255], v248, s[{WS}:{WS+3}], s60 offen sc1')
def ur_write(a):
    a('v_lshrrev_b32 v249, 8, v0'); a('v_mul_u32_u24 v249, 480, v249'); a('v_add_u32 v248, v248, v249')
    a(f'ds_write_b128 v248, v[252:255] offset:{UR}')
    a(f's_cmp_lg_u32 s{sNQ}, 0'); a(f's_cbranch_scc1 L_nz_{a.name}')
    st=a.save()
    a('s_mov_b64 exec, 0x3fffffff')
    for k in range(4): a(f'v_mov_b32 v{252+k}, 0')
    a(f'ds_write_b128 v248, v[252:255] offset:{UR+4096}')
    a('s_mov_b64 exec, -1'); a('s_waitcnt lgkmcnt(0)')
    a.label(f'L_nz_{a.name}'); a.restore(st)
def phase_kgen(a,ts,hook=None):
    L2E=math.log2(math.e)
    import numpy as np
    hi=float(np.float32(L2E)); lo=L2E-hi
    a(f's_lshl_b32 s60, s{sCH}, 4'); a('s_lshr_b32 s96, s96, s60'); a('s_lshl_b32 s96, s96, 16')
    a('s_lshr_b32 s97, s97, s60'); a('s_lshl_b32 s97, s97, 16')
    a(f'v_mov_b32 v166, {f2u(hi)}'); a('v_mul_f32 v167, s96, v166'); a('v_fma_f32 v166, s96, v166, -v167')
    a(f'v_mov_b32 v168, {f2u(lo)}'); a('v_fmac_f32 v166, s96, v168'); a('v_exp_f32 v167, v167')
    a(f'v_mul_f32 v166, {f2u(math.log(2))}, v166'); a('v_fma_f32 v167, v167, v166, v167'); bf16r(a,168,167)
    for k in range(6): a(f'v_lshlrev_b32 v{128+k}, 16, v{232+k}')
    a('v_mul_f32 v128, v128, v168'); a('v_mul_f32 v129, v129, v168'); a('v_mul_f32 v130, v130, v168'); a('v_mul_f32 v131, v131, v168')
    a(f'v_mul_f32 v128, {f2u(L2E)}, v128'); a(f'v_mul_f32 v129, {f2u(1/(2*math.pi))}, v129')
    a('v_mul_f32 v134, 0x43800000, v128'); a('v_mul_f32 v135, 0x43800000, v129')
    a('v_exp_f32 v128, v128'); a('v_fract_f32 v129, v129'); a('v_exp_f32 v134, v134'); a('v_fract_f32 v135, v135')
    g=lambda k:134+2*k
    H=lambda k:150+2*k
    a(f'v_cos_f32 v{g(1)}, v129'); a(f'v_sin_f32 v{g(1)+1}, v129'); a(f'v_cos_f32 v{H(1)}, v135'); a(f'v_sin_f32 v{H(1)+1}, v135')
    cmul(a,208,130,132)
    a(f'v_mul_f32 v{g(1)}, v{g(1)}, v128'); a(f'v_mul_f32 v{g(1)+1}, v{g(1)+1}, v128')
    a(f'v_mul_f32 v{H(1)}, v{H(1)}, v134'); a(f'v_mul_f32 v{H(1)+1}, v{H(1)+1}, v134')
    if hook: hook(a,'pre')
    a(f's_mul_i32 m0, s{sWV}, 8704')
    row=lambda gh,rho: 8*(rho//4)+4*gh+rho%4
    pk=[0]
    def put(src,rows,neg=True):
        t=168+(pk[0]%4); pk[0]+=1
        a(f'v_cvt_pk_bf16_f32 v{t}, v{src}, {"-" if neg else ""}v{src+1}')
        for r in rows: a(f'ds_write_addtid_b32 v{t} offset:{SCR+272*r}')
    a('v_mov_b32 v172, 0x3f80'); a(f'ds_write_addtid_b32 v172 offset:{SCR+272*row(0,0)}')
    tt=[166,174]
    n=[0]
    def cm(d,x,y): cmul(a,d,x,y,tt[n[0]%2]); n[0]+=1
    cm(g(2),g(1),g(1)); cm(H(2),H(1),H(1)); put(g(1),[row(0,1)]); put(H(1),[row(1,0),row(1,1)])
    cm(g(4),g(2),g(2)); cm(H(4),H(2),H(2)); put(g(2),[row(0,2)]); put(H(2),[row(0,9)])
    cm(g(3),g(2),g(1)); cm(H(3),H(2),H(1)); put(g(4),[row(0,4)]); put(H(4),[row(0,12)])
    cm(g(8),g(4),g(4)); cm(H(5),H(4),H(1)); put(g(3),[row(0,3)]); put(H(3),[row(1,9)])
    cm(g(5),g(4),g(1)); cm(H(6),H(4),H(2)); put(g(8),[row(0,8)]); put(H(5),[row(1,12)])
    cm(g(6),g(4),g(2)); cm(H(7),H(4),H(3)); put(g(5),[row(0,5)]); put(H(6),[row(0,14)])
    cm(g(7),g(4),g(3)); cm(212,g(8),g(8)); put(g(6),[row(0,6)]); put(H(7),[row(1,14)])
    cm(210,208,g(8)); put(g(7),[row(0,7)])
    lst=[(H(1),g(2),[row(1,2)]),(H(1),g(4),[row(1,3),row(1,4),row(1,5)]),(H(1),g(6),[row(1,6)]),(H(1),g(8),[row(1,7),row(1,8)]),
         (H(2),g(4),[row(0,10)]),(H(2),g(8),[row(0,11)]),(H(3),g(4),[row(1,10)]),(H(3),g(8),[row(1,11)]),
         (H(4),g(8),[row(0,13)]),(H(5),g(8),[row(1,13)]),(H(6),g(8),[row(0,15)]),(H(7),g(8),[row(1,15)])]
    for k in range(0,12,2):
        cm(128,lst[k][0],lst[k][1]); cm(130,lst[k+1][0],lst[k+1][1]); put(128,lst[k][2]); put(130,lst[k+1][2])
    a('v_and_b32 v173, 31, v1'); a('v_mul_u32_u24 v173, 272, v173'); a('v_lshrrev_b32 v172, 5, v1'); a('v_lshl_add_u32 v173, v172, 4, v173')
    a('v_add_u32 v173, m0, v173')
    for ks in range(8): a(f'ds_read_b128 v[{176+4*ks}:{179+4*ks}], v173 offset:{SCR+32*ks}')
    if hook:
        hook(a,'g'); a(f's_mul_i32 m0, s{sWV}, 8704')
    cur=[208,210]; nxt=[214,216]
    cm(nxt[0],cur[0],212); cm(nxt[1],cur[1],212)
    a('s_waitcnt lgkmcnt(0)')
    for r in range(0,32,2):
        put(cur[0],[r],False); put(cur[1],[r+1],False)
        cur,nxt=nxt,cur
        if r+4<32: cm(nxt[0],cur[0],212); cm(nxt[1],cur[1],212)
    for ks in range(8):
        b=136+4*ks
        a(f'ds_read_b128 v[{b}:{b+3}], v173 offset:{SCR+32*ks}')
    for ks in range(8):
        b=136+4*ks
        a(f'v_mfma_f32_32x32x16_bf16 v[232:247], v[{176+4*ks}:{179+4*ks}], v[{b}:{b+3}], {"v[232:247]" if ks else "0"}')
    a(f's_mul_i32 s60, s{sCH}, {4*8704}'); a(f's_add_u32 s60, s60, {SCR}'); a('v_lshlrev_b32 v172, 2, v1'); a('v_add_u32 v172, s60, v172')
    a(f's_mul_i32 s61, s{sCH}, 16640'); a(f's_lshl_b32 s62, s{sNQ}, 9'); a('s_add_u32 s62, s62, s61')
    a('v_lshlrev_b32 v173, 3, v1'); a('v_add_u32 v173, s62, v173')
    a(f'v_add_u32 v174, {3*2080+12}, v173'); a(f'v_add_u32 v175, {5*2080+12}, v173')
    for r in range(16): a(f'ds_write_addtid_b32 v{232+r} offset:{SCR+272*r}')
    if hook: hook(a,'p')
    a('s_waitcnt lgkmcnt(0)'); a('s_barrier')
    stamp(a,ts)
    if hook: hook(a,'b1')
    T=128
    a(f's_cmp_lg_u32 s{sNQ}, 0'); a(f's_cbranch_scc1 L_cd_{a.name}')
    st=a.save()
    for o in range(4):
        for e in range(9): a(f'ds_read_b32 v{176+9*o+e}, v172 offset:{o*8704+272*e}')
    a('v_mul_u32_u24 v170, 2080, v1'); a('v_add_u32 v170, s61, v170')
    for k in range(4): a(f'v_mov_b32 v{232+k}, 0')
    a('s_mov_b64 exec, 0xff'); a(f'ds_write_b128 v170, v[232:235] offset:{KT}'); a('s_mov_b64 exec, -1')
    for e in range(9): a(f'v_add_f32 v{176+e}, v{176+e}, v{185+e}')
    for e in range(9): a(f'v_add_f32 v{194+e}, v{194+e}, v{203+e}')
    for e in range(9): a(f'v_add_f32 v{T+e}, v{176+e}, v{194+e}')
    a('s_mov_b64 exec, 1'); a(f'v_add_f32 v{T}, s97, v{T}'); a(f'v_cvt_pk_bf16_f32 v232, 0, v{T}')
    a(f'ds_write_b32 v173, v232 offset:{KT+2080+12}'); a(f'ds_write_b32 v173, v232 offset:{KT+5*2080+8}'); a('s_mov_b64 exec, -1')
    a('s_waitcnt lgkmcnt(0)')
    a(f's_branch L_kw_{a.name}')
    a.label(f'L_cd_{a.name}'); a.restore(st)
    a(f's_lshl_b32 s60, s{sNQ}, 1'); a('s_add_u32 s60, s60, 8'); a(f's_cmp_eq_u32 s{sNQ}, 1'); a('s_cselect_b32 s60, 9, s60')
    a('s_cselect_b64 s[62:63], -1, 0'); a('s_mul_i32 s60, s60, 272'); a('v_add_u32 v172, s60, v172')
    for o in range(4):
        for e in range(3): a(f'ds_read_b32 v{176+3*o+e}, v172 offset:{o*8704+272*e}')
    a('s_mov_b32 s60, 0xaaaaaaaa'); a('s_or_b32 s60, s60, s62'); a('s_mov_b32 s61, s60')
    for e in range(3): a(f'v_add_f32 v{176+e}, v{176+e}, v{179+e}'); a(f'v_add_f32 v{182+e}, v{182+e}, v{185+e}')
    a(f'v_add_f32 v{T}, v176, v182'); a(f'v_add_f32 v{T+5}, v177, v183'); a(f'v_add_f32 v{T+6}, v178, v184')
    a(f'v_mov_b32 v{T+1}, v{T}'); a(f'v_mov_b32 v{T+2}, v{T}')
    a(f'v_cndmask_b32 v{T+3}, v{T}, v{T+5}, s[62:63]'); a(f'v_cndmask_b32 v{T+4}, v{T}, v{T+5}, s[60:61]')
    a(f'v_cndmask_b32 v{T+6}, v{T+5}, v{T+6}, s[62:63]'); a(f'v_mov_b32 v{T+7}, v{T+6}'); a(f'v_mov_b32 v{T+8}, v{T+6}')
    a.label(f'L_kw_{a.name}')
    E=140;O=144;EM=148;OM=150
    for k in range(4): a(f'v_cvt_pk_bf16_f32 v{O+k}, v{T+2*k+1}, v{T+2*k+2}')
    for k in range(4): a(f'v_cvt_pk_bf16_f32 v{E+k}, v{T+2*k}, v{T+2*k+1}')
    a(f'ds_write_b64 v173, v[{O}:{O+1}] offset:{KT+16}'); a(f'ds_write_b64 v173, v[{O+2}:{O+3}] offset:{KT+2080+16}')
    a(f'v_mov_b32 v{OM}, v{O+1}'); a(f'v_mov_b32 v{OM+1}, v{O+2}'); a(f'v_mov_b32 v{EM}, v{E+1}'); a(f'v_mov_b32 v{EM+1}, v{E+2}')
    a(f'ds_write_b64 v173, v[{E}:{E+1}] offset:{KT+7*2080+8}'); a(f'ds_write_b64 v173, v[{E+2}:{E+3}] offset:{KT+6*2080+16}')
    a(f'ds_write2_b32 v174, v{E}, v{E+3} offset0:0 offset1:1'); a(f'ds_write2_b32 v175, v{O}, v{O+3} offset0:0 offset1:1')
    a(f'ds_write_b64 v173, v[{EM}:{EM+1}] offset:{KT+2*2080+16}'); a(f'ds_write_b64 v173, v[{OM}:{OM+1}] offset:{KT+4*2080+16}')
def phase_conv(a,ts,fused,other=None):
    a(f's_cmp_ge_u32 s{sWV}, 4'); a(f's_cbranch_scc1 L_cv_skip_{a.name}')
    st=a.save()
    a(f's_lshr_b32 s60, s{sWV}, 1'); a(f's_and_b32 s61, s{sWV}, 1')
    a('s_mul_i32 s62, s60, 16640'); a('s_lshl_b32 s63, s61, 7'); a('s_add_u32 s62, s62, s63')
    A1,A2,BA=128,129,130
    a('v_and_b32 v131, 3, v1'); a('v_bfe_u32 v132, v1, 2, 1'); a('v_lshl_add_u32 v133, v131, 1, v132')
    a(f'v_mul_u32_u24 v{A1}, 2080, v133'); a('v_xor_b32 v133, 1, v133'); a(f'v_mul_u32_u24 v{A2}, 2080, v133')
    a('v_lshrrev_b32 v131, 4, v1'); a('v_bfe_u32 v132, v1, 2, 2'); a('v_lshl_add_u32 v133, v131, 1, v132')
    a('v_lshrrev_b32 v132, 1, v133'); a(f'v_lshl_add_u32 v{A1}, v132, 3, v{A1}')
    a('v_add_u32 v133, 1, v133'); a('v_lshrrev_b32 v132, 1, v133'); a(f'v_lshl_add_u32 v{A2}, v132, 3, v{A2}')
    a(f'v_add_u32 v{A1}, s62, v{A1}'); a(f'v_add_u32 v{A2}, s62, v{A2}')
    a('s_mul_i32 s62, s60, 4576'); a('s_lshl_b32 s63, s61, 8'); a('s_add_u32 s62, s62, s63'); a(f's_add_u32 s62, s62, {UR+480}')
    a('v_and_b32 v132, 15, v1'); a('v_lshlrev_b32 v132, 5, v132'); a(f'v_lshlrev_b32 v{BA}, 4, v131'); a(f'v_sub_u32 v{BA}, v{BA}, v132'); a(f'v_add_u32 v{BA}, s62, v{BA}')
    ACC=136; BB=168; AA=232
    def rdB(rl,d):
        r=BB+32*(rl%2)+4*d
        a(f'ds_read_b128 v[{r}:{r+3}], v{BA} offset:{512*(7-d)+64*rl}')
    def rdA(n):
        rl,k=divmod(n,8); r=AA+4*(n%5); o=KT+32*(rl+8*k)
        a(f'ds_read_b64 v[{r}:{r+1}], v{A1} offset:{o}'); a(f'ds_read_b64 v[{r+2}:{r+3}], v{A2} offset:{o}')
    rdA(0)
    for d in range(8): rdB(0,d)
    for n in range(1,4): rdA(n)
    for rl in range(4):
        for k in range(8):
            n=rl*8+k; r=AA+4*(n%5)
            for d in range(8-k):
                t=k+d; b=BB+32*(rl%2)+4*d
                C=f'v[{ACC+4*t}:{ACC+4*t+3}]' if not (rl==0 and k==0) else '0'
                a(f'v_mfma_f32_16x16x32_bf16 v[{ACC+4*t}:{ACC+4*t+3}], v[{r}:{r+3}], v[{b}:{b+3}], {C}')
                if d==0 and n+4<32: rdA(n+4)
                if rl<3 and k<4 and d in (1,2): rdB(rl+1,2*k+d-1)
    a('s_waitcnt lgkmcnt(0)')
    if other is None:
        a.label(f'L_cv_skip_{a.name}'); a.restore(st)
    else:
        a(f's_branch L_cv_join_{a.name}')
        a.label(f'L_cv_skip_{a.name}'); a.restore(st); other(a); a.label(f'L_cv_join_{a.name}')
    stamp(a,ts)
    a('s_barrier')
    a(f's_cmp_ge_u32 s{sWV}, 4'); a(f's_cbranch_scc1 L_cv_s2_{a.name}')
    st=a.save()
    a('v_lshrrev_b32 v131, 4, v1'); a('v_lshlrev_b32 v132, 4, v1'); a('v_lshl_add_u32 v132, v131, 6, v132')
    a(f's_mul_i32 s60, s{sWV}, 10240'); a('v_add_u32 v132, s60, v132')
    for t in range(8): a(f'ds_write_b128 v132, v[{ACC+4*t}:{ACC+4*t+3}] offset:{1280*t}')
    a('s_waitcnt lgkmcnt(0)')
    a.label(f'L_cv_s2_{a.name}'); a.restore(st)
    a('v_and_b32 v131, 3, v1'); a('v_mul_u32_u24 v131, 320, v131'); a('v_lshrrev_b32 v132, 2, v1'); a('v_lshl_add_u32 v131, v132, 4, v131')
    a(f's_mul_i32 s60, s{sWV}, 1280'); a('v_add_u32 v131, s60, v131')
    a('v_lshrrev_b32 v132, 4, v1'); a(f's_lshl_b32 s60, s{sWV}, 2'); a('v_add_u32 v132, s60, v132'); a('v_mul_u32_u24 v132, 57344, v132')
    a('v_and_b32 v133, 15, v1'); a('v_lshl_add_u32 v132, v133, 4, v132')
    a(f's_lshl_b32 s60, s{sP}, 8'); a(f's_add_u32 s60, s60, {WS_SP}')
    a('s_barrier')
    for w in range(4): a(f'ds_read_b128 v[{136+4*w}:{139+4*w}], v131 offset:{10240*w}')
    for k in range(4): a(f'v_add_f32 v{136+k}, v{136+k}, v{140+k}')
    for k in range(4): a(f'v_add_f32 v{144+k}, v{144+k}, v{148+k}')
    for k in range(4): a(f'v_cvt_pk_bf16_f32 v{136+k}, v{136+k}, v{144+k}')
    a(f'buffer_store_dwordx4 v[136:139], v132, s[{WS}:{WS+3}], s60 offen sc1',tag='sst')
if __name__=='__main__':
    ts=True
    A=Asm(); a=A; a.name='A'
    prologue(a,None)
    a('s_cmp_lt_u32 s2, 32'); a('s_cbranch_scc1 L_ln')
    st=a.save()
    phase_g1(a,False,False)
    a('s_endpgm')
    a.label('L_ln'); a.restore(st)
    phase_ln(a,False)
    a.label('L_end_A'); a('s_endpgm')
    B=Asm(); a=B; a.name='B'
    prologue(a,None)
    a('s_cmp_lt_u32 s2, 32'); a('s_cbranch_scc1 L_end_B')
    stamp(a,ts)
    kgen_loads(a); ur_load(a)
    a('s_waitcnt vmcnt(0) lgkmcnt(0)'); stamp(a,ts)
    phase_kgen(a,ts)
    ur_write(a)
    a('s_waitcnt lgkmcnt(0)'); a('s_barrier'); stamp(a,ts)
    phase_conv(a,ts,False)
    stamp(a,ts)
    if ts: stamps_out(a,0)
    a.label('L_end_B'); a('s_endpgm')
    open(sys.argv[1],'w').write(make_file([('ka_kernel',256,512,LDS_TOTAL),('kb_kernel',256,512,LDS_TOTAL)],[('ka_kernel',A,256,256),('kb_kernel',B,256,256)]))
    print('nops',B.nops,'lines',len(B.L))
```

```python
from gen2 import *
import os
sRB2,sCB,sR2,sM2,sK2=98,99,100,101,59
MP=49152; MPS=17472; SS=0
def g2_ids(a):
    a(f's_mul_i32 s60, s{sI}, 37'); a('s_lshr_b32 s60, s60, 8')
    a('s_mul_i32 s61, s60, 7'); a(f's_sub_u32 s{sCB}, s{sI}, s61')
    a(f's_lshl_b32 s{sRB2}, s{sXCD}, 2'); a(f's_add_u32 s{sRB2}, s{sRB2}, s60')
    a(f's_lshl_b32 s{sR2}, s{sCB}, 2'); a(f's_add_u32 s{sR2}, s{sR2}, s61'); a(f's_cmp_ge_u32 s{sR2}, 28'); a('s_cselect_b32 s62, 28, 0'); a(f's_sub_u32 s{sR2}, s{sR2}, s62')
def w2_setup(a,vw,vt):
    g2_ids(a)
    a(f's_lshr_b32 s60, s{sWV}, 1'); a(f's_mul_i32 s61, s60, {28*16}'); a(f's_and_b32 s62, s{sWV}, 1'); a('s_lshl_b32 s62, s62, 3'); a('s_add_u32 s61, s61, s62')
    a(f'v_lshrrev_b32 v{vw}, 3, v1'); a(f'v_add_u32 v{vw}, s61, v{vw}'); a(f'v_mul_u32_u24 v{vw}, 896, v{vw}')
    a(f'v_lshrrev_b32 v{vt}, 2, v1'); a(f'v_and_b32 v{vt}, 4, v{vt}'); a(f'v_xor_b32 v{vt}, v{vt}, v1'); a(f'v_and_b32 v{vt}, 7, v{vt}')
    a(f'v_lshl_add_u32 v{vw}, v{vt}, 4, v{vw}'); a(f's_lshl_b32 s61, s{sCB}, 7'); a(f'v_add_u32 v{vw}, s61, v{vw}')
    a(f's_lshl_b32 s{sM2}, s{sWV}, 10')
    a(f's_mul_i32 s{sK2}, s{sR2}, 14336')
    t=vt+1
    a(f'v_bfe_u32 v{t}, v1, 2, 2'); a(f'v_lshrrev_b32 v{vt}, 5, v1'); a(f'v_lshl_add_u32 v{vt}, v{vt}, 2, v{t}'); a(f'v_lshlrev_b32 v{vt}, 7, v{vt}')
    a(f'v_lshrrev_b32 v{t}, 1, v{t}'); a(f'v_lshl_add_u32 v{vt}, v{t}, 6, v{vt}')
    a(f'v_bfe_u32 v{t}, v1, 4, 1'); a(f'v_lshl_add_u32 v{vt}, v{t}, 5, v{vt}')
    a(f'v_and_b32 v{t}, 3, v1'); a(f'v_lshl_add_u32 v{vt}, v{t}, 3, v{vt}')
    a('s_lshl_b32 s60, s60, 11'); a(f'v_add_u32 v{vt}, s60, v{vt}'); a(f'v_xor_b32 v{t}, 64, v{vt}')
def w2_dma1(a,vw,lds,tag):
    a(f's_add_u32 m0, s{sM2}, {lds}')
    a(f'buffer_load_dwordx4 v{vw}, s[{W2}:{W2+3}], s{sK2} offen lds',tag=tag)
    a(f's_add_u32 s{sK2}, s{sK2}, 14336'); a(f's_cmp_eq_u32 s{sK2}, {28*14336}'); a(f's_cselect_b32 s{sK2}, 0, s{sK2}')
def w2_rd(vb,dst,off):
    L=[]
    for dt in range(2):
        for j in range(2):
            r=dst+4*dt+2*j
            L.append(f'ds_read_b64_tr_b16 v[{r}:{r+1}], v{vb+dt} offset:{off+1024*j}')
    return L
def w2_toreg(a,vt,base,s0,n,tmp):
    a(f'v_add_u32 v{tmp}, {base}, v{vt}'); a(f'v_add_u32 v{tmp+1}, {base}, v{vt+1}')
    for s in range(n):
        for x in w2_rd(tmp,16+8*(s0+s),8192*s): a(x)
def final_loads(a):
    a('v_and_b32 v246, 31, v0'); a('v_lshrrev_b32 v247, 5, v0')
    a(f's_lshl_b32 s60, s{sRB2}, 6'); a('v_lshl_add_u32 v245, v247, 2, s60'); a('v_mul_u32_u24 v245, 896, v245')
    a(f's_lshl_b32 s60, s{sCB}, 7'); a('v_lshl_add_u32 v246, v246, 2, s60'); a('v_add_u32 v245, v245, v246')
    for i in range(4): a(f'buffer_load_dword v{240+i}, v245, s[{X_}:{X_+3}], 0 offen offset:{896*i}')
    srd(a,MS,54,896)
    a(f'buffer_load_dword v244, v246, s[{MS}:{MS+3}], 0 offen')
NH=10
def phase_g2(a,ts,vt,fused,s_wait=None):
    ACC=128; HR=160; BR=200
    sH=47
    a(f's_and_b32 s60, s{sWV}, 1'); a(f's_lshl_b32 s61, s{sRB2}, 1'); a('s_add_u32 s60, s60, s61'); a('s_mul_i32 s60, s60, 112')
    a(f's_lshr_b32 s61, s{sWV}, 1'); a('s_mul_i32 s61, s61, 28'); a('s_add_u32 s60, s60, s61'); a('s_lshl_b32 s60, s60, 10')
    a('v_lshlrev_b32 v7, 4, v1'); a('v_add_u32 v7, s60, v7')
    a(f's_add_u32 s{sH}, s{sR2}, 14'); a(f's_cmp_ge_u32 s{sH}, 28'); a('s_cselect_b32 s62, 28, 0'); a(f's_sub_u32 s{sH}, s{sH}, s62'); a(f's_lshl_b32 s{sH}, s{sH}, 10')
    def hld(n):
        r=HR+4*(n%NH)
        return [f'buffer_load_dwordx4 v[{r}:{r+3}], v7, s[{WS}:{WS+3}], s{sH} offen sc1',
                f's_add_u32 s{sH}, s{sH}, 1024', f's_cmp_eq_u32 s{sH}, {28*1024}', f's_cselect_b32 s{sH}, 0, s{sH}']
    for n in range(NH):
        for x in hld(n): a(x)
    a(f'v_add_u32 v8, {W2R}, v{vt}'); a(f'v_add_u32 v9, {W2R}, v{vt+1}'); a(f'v_add_u32 v10, {STG2}, v{vt}'); a(f'v_add_u32 v11, {STG2}, v{vt+1}')
    def brd(n):
        return w2_rd(10 if n<6 else 8, BR+8*(n%4), 8192*(n if n<6 else n-6))
    a.wait_vm('w2r'); a.wait_vm('sst'); a('s_barrier')
    if s_wait: s_wait(a,'pub')
    stamp(a,ts)
    for n in range(3):
        for x in brd(n): a(x)
    for n in range(28):
        h=HR+4*(n%NH); b=BR+8*(n%4) if n<14 else 16+8*(n-14)
        for dt in range(2):
            c=ACC+16*dt
            a(f'v_mfma_f32_32x32x16_bf16 v[{c}:{c+15}], v[{h}:{h+3}], v[{b+4*dt}:{b+4*dt+3}], {f"v[{c}:{c+15}]" if n else "0"}')
            if dt==0 and n+3<14:
                for x in brd(n+3): a(x)
        if n+NH<28:
            for x in hld(n+NH): a(x)
        if n==14:
            a('s_barrier')
        if n==16 and s_wait: s_wait(a,'issue')
        if n==22:
            if s_wait: s_wait(a,'check')
            a(f's_mul_i32 s60, s{sRB2}, 57344'); a(f's_lshl_b32 s61, s{sCB}, 13'); a('s_add_u32 s60, s60, s61'); a(f's_add_u32 s60, s60, {WS_SP}')
            a('v_lshlrev_b32 v12, 4, v0')
            a(f'buffer_load_dwordx4 v[232:235], v12, s[{WS}:{WS+3}], s60 offen sc1')
            a('v_lshrrev_b32 v13, 4, v0'); a('v_lshl_add_u32 v12, v13, 4, v12')
    stamp(a,ts)
    a('v_and_b32 v13, 1, v1'); a(f'v_mul_u32_u24 v13, {32*272+64}, v13'); a('v_bfe_u32 v14, v1, 1, 4'); a('v_mul_u32_u24 v14, 272, v14'); a('v_add_u32 v13, v13, v14')
    a('v_lshrrev_b32 v14, 5, v1'); a('v_lshl_add_u32 v13, v14, 4, v13')
    a(f's_lshr_b32 s60, s{sWV}, 1'); a(f's_mul_i32 s60, s60, {MPS}'); a(f's_and_b32 s61, s{sWV}, 1'); a('s_lshl_b32 s61, s61, 7'); a('s_add_u32 s60, s60, s61')
    a(f's_add_u32 s60, s60, {MP}'); a('v_add_u32 v13, s60, v13')
    for dt in range(2):
        for u in range(4):
            r=ACC+16*dt+4*u
            a(f'ds_write_b128 v13, v[{r}:{r+3}] offset:{dt*16*272+32*u}')
    a(f'ds_write_b128 v12, v[232:235] offset:{SS}')
    a('v_and_b32 v13, 31, v0'); a('v_mul_u32_u24 v13, 272, v13'); a('v_lshrrev_b32 v14, 5, v0'); a('v_lshl_add_u32 v13, v14, 4, v13')
    a(f'v_add_u32 v14, {MP}, v13')
    a('s_waitcnt lgkmcnt(0)'); a('s_barrier')
    for kq in range(4):
        for o in range(2):
            r=160+8*kq+4*o
            a(f'ds_read_b128 v[{r}:{r+3}], v14 offset:{kq*MPS+o*(32*272+64)}')
    a(f'ds_read_b128 v[232:235], v13 offset:{SS}')
    a('v_lshlrev_b32 v246, 16, v244'); a('v_and_b32 v247, 0xffff0000, v244')
    for k in range(8): a(f'v_add_f32 v{160+k}, v{160+k}, v{168+k}')
    for k in range(8): a(f'v_add_f32 v{176+k}, v{176+k}, v{184+k}')
    for k in range(8): a(f'v_add_f32 v{160+k}, v{160+k}, v{246+k//4}')
    for k in range(8): a(f'v_add_f32 v{160+k}, v{160+k}, v{176+k}')
    for k in range(8): a(f'v_mul_f32 v{168+k}, {f2u(-math.log2(math.e))}, v{160+k}')
    for k in range(8): a(f'v_exp_f32 v{168+k}, v{168+k}')
    for i in range(4): a(f'v_lshlrev_b32 v{176+i}, 16, v{232+i}'); a(f'v_and_b32 v{180+i}, 0xffff0000, v{232+i}')
    for k in range(8): a(f'v_add_f32 v{168+k}, 1.0, v{168+k}')
    for k in range(8): a(f'v_rcp_f32 v{168+k}, v{168+k}')
    for i in range(4): a(f'v_lshlrev_b32 v{184+i}, 16, v{240+i}'); a(f'v_and_b32 v{188+i}, 0xffff0000, v{240+i}')
    for k in range(8): a(f'v_mul_f32 v{160+k}, v{160+k}, v{176+k}')
    for i in range(4):
        a(f'v_fmac_f32 v{184+i}, v{160+i}, v{168+i}'); a(f'v_fmac_f32 v{188+i}, v{164+i}, v{172+i}')
        a(f'v_cvt_pk_bf16_f32 v{184+i}, v{184+i}, v{188+i}')
        a(f'buffer_store_dword v{184+i}, v245, s[{OUT}:{OUT+3}], 0 offen offset:{896*i}')
if __name__=='__main__':
    ts=int(os.environ.get("TS","1"))
    A=Asm(); a=A; a.name='A'
    prologue(a,None)
    a('s_cmp_lt_u32 s2, 32'); a('s_cbranch_scc1 L_ln')
    st=a.save()
    phase_g1(a,False,False)
    a('s_endpgm')
    a.label('L_ln'); a.restore(st)
    phase_ln(a,False)
    a.label('L_end_A'); a('s_endpgm')
    B=Asm(); a=B; a.name='B'
    prologue(a,None)
    a('s_cmp_lt_u32 s2, 32'); a('s_cbranch_scc1 L_end_B')
    kgen_loads(a); ur_load(a)
    phase_kgen(a,False)
    ur_write(a)
    a('s_waitcnt lgkmcnt(0)'); a('s_barrier')
    phase_conv(a,False,False)
    a.label('L_end_B'); a('s_endpgm')
    C=Asm(); a=C; a.name='C'
    prologue(a,None)
    a('s_cmp_lt_u32 s2, 32'); a('s_cbranch_scc1 L_end_C')
    stamp(a,ts)
    w2_setup(a,4,5)
    for s in range(8): w2_dma1(a,4,STG1+8192*s,'s1')
    for s in range(6): w2_dma1(a,4,STG2+8192*s,'s2')
    final_loads(a)
    a.wait_vm('s2'); a('s_barrier')
    w2_toreg(a,5,STG1,0,8,8); w2_toreg(a,5,STG2,8,6,10)
    a('s_waitcnt lgkmcnt(0)'); a('s_barrier')
    for s in range(6): w2_dma1(a,4,STG2+8192*s,'w2r')
    for s in range(8): w2_dma1(a,4,W2R+8192*s,'w2r')
    stamp(a,ts)
    phase_g2(a,ts,5,False)
    stamp(a,ts)
    if ts: stamps_out(a,0)
    a.label('L_end_C'); a('s_endpgm')
    open(sys.argv[1],'w').write(make_file([(n,256,512,LDS_TOTAL) for n in ('ka_kernel','kb_kernel','kc_kernel')],[('ka_kernel',A,256,256),('kb_kernel',B,256,256),('kc_kernel',C,256,256)]))
    print('nops',C.nops,'lines',len(C.L))
```

```python
from gen3 import *
ts=int(os.environ.get("TS","1"))
a=Asm(); a.name='F'
prologue(a,None)
a('s_cmp_lt_u32 s2, 32'); a('s_cbranch_scc1 L_ln')
st0=a.save()
stamp(a,ts)
VW,VT=2,5
def w0only(a,name,fn,wave=0):
    a(f's_cmp_lg_u32 s{sWV}, {wave}'); a(f's_cbranch_scc1 L_w0_{name}')
    st=a.save(); n0=len(a.vq); fn(); a.label(f'L_w0_{name}'); a.restore(st)
def g1hook(a,u):
    if u==5: kgen_loads(a)
    if u==7: w2_setup(a,VW,VT)
    if u in (8,9,10,11):
        for k in range(2): w2_dma1(a,VW,STG1+8192*(2*(u-8)+k),'s1')
    if u=='tail':
        a.wait_vm('s1'); a('s_barrier')
        for s in range(6): w2_dma1(a,VW,STG2+8192*s,'s2')
        a(f'v_add_u32 v7, {STG1}, v{VT}'); a(f'v_add_u32 v8, {STG1}, v{VT+1}')
        rd=[x for s in range(8) for x in w2_rd(7,16+8*s,8192*s)]
        g=a.gelu(1)
        g=[(x,'hst') if x.startswith('buffer_store') else (x,None) for x in g]
        k=0
        for i,(x,t) in enumerate(g):
            a(x,tag=t)
            if i%3==2 and k<len(rd): a(rd[k]); k+=1
        while k<len(rd): a(rd[k]); k+=1
phase_g1(a,True,ts,g1hook)
def khook(a,w):
    if w=='pre':
        def f():
            poll(a,DBG,'0',1,'v3','i1',first=False)
            a(f's_mov_b32 s60, {WS_FL+256*FL_UR}')
            poll(a,WS,'s60',32,'v3','ur',first=False)
            a('s_waitcnt vmcnt(0)')
        w0only(a,'a',f)
        a('s_waitcnt lgkmcnt(0)'); a('s_barrier'); stamp(a,ts)
        ur_load(a)
    if w=='g':
        a.wait_vm('hst'); a('s_barrier')
        def f():
            a(f's_lshl_b32 s60, s{sRB}, 8'); a(f's_add_u32 s60, s60, {WS_FL+256*FL_H}')
            flag_add(a,'s60')
        w0only(a,'b',f)
        stamp(a,ts)
        w2_toreg(a,VT,STG2,8,6,7)
    if w=='b1':
        for s in range(6): w2_dma1(a,VW,STG2+8192*s,'w2r')
phase_kgen(a,ts,khook)
ur_write(a)
a('s_waitcnt lgkmcnt(0)'); a('s_barrier'); stamp(a,ts)
for s in range(8): w2_dma1(a,VW,W2R+8192*s,'w2r')
def other(a):
    def f():
        a(f's_lshr_b32 s60, s{sRB2}, 1'); a('s_lshl_b32 s60, s60, 8'); a(f's_add_u32 s60, s60, {WS_FL+256*FL_H}')
        poll(a,WS,'s60',14,'v3','h',first=False); a('s_waitcnt vmcnt(0)')
    w0only(a,'c',f,4)
phase_conv(a,ts,True,other)
def swait(a,w):
    if w=='pub':
        def f():
            a(f's_lshr_b32 s60, s{sP}, 5'); a('s_lshl_b32 s60, s60, 8'); a(f's_add_u32 s60, s60, {WS_FL+256*FL_S}')
            flag_add(a,'s60')
        a(f's_cmp_lg_u32 s{sWV}, 0'); a('s_cbranch_scc1 L_w0_d'); st=a.save(); f(); a.label('L_w0_d'); a.restore(st); final_loads(a)
    if w=='issue':
        a(f's_lshl_b32 s61, s{sCB}, 8'); a(f's_add_u32 s61, s61, {WS_FL+256*FL_S}'); poll_issue(a,WS,'s61','v3')
    if w=='check':
        poll(a,WS,'s61',32,'v3','s',first=True); stamp(a,ts)
phase_g2(a,ts,VT,True,swait)
stamp(a,ts)
if ts: stamps_out(a,0)
a('s_endpgm')
a.label('L_ln'); a.restore(st0)
flag_init(a)
phase_ln(a,True)
a.label('L_end_F'); a('s_endpgm')
open(sys.argv[1],'w').write(make_file([(KN,256,512,LDS_TOTAL)],[(KN,a,256,256)]))
print('nops',a.nops,'lines',len(a.L))
```
